```python
import torch

def _softmax(x, axis=-1):
    return torch.softmax(x, dim=axis)
def _gelu(x):
    return torch.nn.functional.gelu(x, approximate="tanh")
def _silu(x):
    return torch.nn.functional.silu(x)
def _sigmoid(x):
    return torch.sigmoid(x)
def _layernorm(x, axis=-1, eps=1e-5):
    m = x.mean(dim=axis, keepdim=True)
    v = x.var(dim=axis, keepdim=True, unbiased=False)
    return (x - m) / torch.sqrt(v + eps)
def _scatter_add(tgt, idx, src, axis=0):
    return tgt.clone().index_add_(axis, idx, src)
def _segment_sum(src, seg, n):
    out = torch.zeros((n,) + src.shape[1:], dtype=src.dtype)
    return out.index_add_(0, seg, src)
def _pad(x, pw):
    flat = tuple(v for pair in reversed(pw) for v in pair)
    return torch.nn.functional.pad(x, flat)

kernel_name = 'interleave_layers__mha_block__mixer_s_mlp__prompt'

def setup_inputs():

    _w = (lambda a: (lambda t: t.to(torch.bfloat16) if t.is_floating_point() else t)(torch.as_tensor(a)))
    def _A_setup():
        B, S, D, H = 1, 2048, 448, 16
        return {
            "x": _w((lambda *s: torch.randn(*s, dtype=torch.bfloat16) * 0.05)(B, S, D)),
            "wqkv": _w((lambda *s: torch.randn(*s, dtype=torch.bfloat16) * 0.05)(D, 3 * D)),
            "wo": _w((lambda *s: torch.randn(*s, dtype=torch.bfloat16) * 0.05)(D, D)),
        }
    _A_in = _A_setup()

    def _B_setup():
        B, S, D, F = 1, 2048, 448, 1792
        return {
            "x":  _w((lambda *s: torch.randn(*s, dtype=torch.bfloat16) * 0.05)(B, S, D)),
            "w1": _w((lambda *s: torch.randn(*s, dtype=torch.bfloat16) * 0.8)(D, D) * (D ** -0.5)),
            "w2": _w((lambda *s: torch.randn(*s, dtype=torch.bfloat16) * 0.8)(D, D) * (D ** -0.5)),
            "w3": _w((lambda *s: torch.randn(*s, dtype=torch.bfloat16) * 0.8)(D, F) * (D ** -0.5)),
            "w4": _w((lambda *s: torch.randn(*s, dtype=torch.bfloat16) * 0.8)(F, D) * (F ** -0.5)),
        }
    _B_in = _B_setup()

    return {
        "A_x": _A_in["x"],
        "A_wqkv": _A_in["wqkv"],
        "A_wo": _A_in["wo"],
        "B_x": _B_in["x"],
        "B_w1": _B_in["w1"],
        "B_w2": _B_in["w2"],
        "B_w3": _B_in["w3"],
        "B_w4": _B_in["w4"],
    }

def reference(A_x, A_wqkv, A_wo, B_x, B_w1, B_w2, B_w3, B_w4):
    def _A_ref(x, wqkv, wo):
        B, S, D = x.shape
        H = 16
        Dh = D // H
        qkv = (lambda x, *d: x.permute(*d))((x @ wqkv).reshape(B, S, 3, H, Dh), 2, 0, 3, 1, 4)
        q, k, v = qkv[0], qkv[1], qkv[2]
        scores = torch.einsum("bhqd,bhkd->bhqk", q, k) * (Dh ** -0.5)
        p = _softmax(scores, axis=-1)
        o = torch.einsum("bhqk,bhkd->bhqd", p, v)
        return (lambda x, *d: x.permute(*d))(o, 0, 2, 1, 3).reshape(B, S, D) @ wo

    def _B_ref(x, w1, w2, w3, w4):
        B, S, D = x.shape
        h = _gelu(_layernorm(x, axis=-1) @ w1)
        c = D // 4
        g0 = _pad(h[:, :, 0*c:1*c], ((0, 0), (1, 0), (0, 0)))[:, :S, :]
        g1 = _pad(h[:, :, 1*c:2*c], ((0, 0), (0, 1), (0, 0)))[:, 1:, :]
        g2 = _pad(h[:, :, 2*c:3*c], ((0, 0), (2, 0), (0, 0)))[:, :S, :]
        g3 = _pad(h[:, :, 3*c:   ], ((0, 0), (0, 2), (0, 0)))[:, 2:, :]
        hs = torch.concatenate([g0, g1, g2, g3], axis=-1) @ w2
        x1 = x + hs
        h2 = _gelu(_layernorm(x1, axis=-1) @ w3) @ w4
        return x1 + h2

    x = A_x
    x = x + _A_ref(_layernorm(x, axis=-1), A_wqkv, A_wo)
    x = x + _B_ref(_layernorm(x, axis=-1), B_w1, B_w2, B_w3, B_w4)
    x = x + _A_ref(_layernorm(x, axis=-1), A_wqkv, A_wo)
    x = x + _B_ref(_layernorm(x, axis=-1), B_w1, B_w2, B_w3, B_w4)
    return x
```

```python
import re

TRANS = ("v_exp_f32", "v_log_f32", "v_rcp_f32", "v_rsq_f32", "v_sqrt_f32", "v_sin_f32", "v_cos_f32")
RW_DST = ("v_fmac_f32", "v_dot2c_f32_bf16", "v_writelane_b32")

def regs_of(tok):
    tok = tok.strip()
    tok = tok.lstrip("-")
    m = re.fullmatch(r"(?:abs\()?\|?([vas])(\d+)\|?\)?", tok)
    if m:
        return [(m.group(1), int(m.group(2)))]
    m = re.fullmatch(r"([vas])\[(\d+):(\d+)\]", tok)
    if m:
        return [(m.group(1), i) for i in range(int(m.group(2)), int(m.group(3)) + 1)]
    if tok == "vcc": return [("s", "vcc")]
    if tok in ("vcc_lo", "vcc_hi"): return [("s", "vcc")]
    if tok in ("exec", "exec_lo", "exec_hi"): return [("s", "exec")]
    if tok == "m0": return [("s", "m0")]
    return []

class Ins:
    __slots__ = ("text", "op", "rd", "wr", "kind", "srcc", "srcab", "cond", "tag", "label", "target", "wide", "data")
    def __init__(self, text, cond=False, tag=None):
        self.text = text; self.cond = cond; self.tag = tag
        self.label = None; self.target = None
        self.rd = set(); self.wr = set(); self.srcc = set(); self.srcab = set(); self.wide = False; self.data = set()
        t = text.split(";")[0].strip()
        if t.endswith(":"):
            self.op = "label"; self.kind = "label"; self.label = t[:-1]; return
        if t.startswith("."):
            self.op = "dir"; self.kind = "dir"; return
        parts = t.split(None, 1)
        op = parts[0]; self.op = op
        rest = parts[1] if len(parts) > 1 else ""
        ops = [x.strip() for x in rest.split(",")] if rest else []
        mods = ""
        if ops:
            last = ops[-1].split(None, 1)
        m = re.search(r"\s(op_sel|op_sel_hi|neg_lo|neg_hi|offset|offset0|offen|sc0|sc1|nt|lds|quad_perm|row_|clamp|mul:|dst_sel|src0_sel)", rest)
        if m:
            mods = rest[m.start():]; rest = rest[:m.start()]
        ops = [x.strip() for x in rest.split(",")] if rest.strip() else []
        R = [regs_of(x) for x in ops]
        flat = lambda l: set(x for y in l for x in y)
        if op.startswith("v_mfma"):
            self.kind = "mfma"; self.wr = set(R[0]); self.srcab = flat(R[1:3]); self.srcc = set(R[3]); self.rd = self.srcab | self.srcc
        elif op.startswith("buffer_load") or op.startswith("global_load"):
            if re.search(r"\blds\b", mods):
                self.kind = "dma"; self.rd = flat(R) | {("s", "m0")}
            else:
                self.kind = "vload"; self.wr = set(R[0]); self.rd = flat(R[1:])
        elif op.startswith("buffer_store"):
            self.kind = "vstore"; self.rd = flat(R); self.data = set(R[0]); self.wide = "x4" in op or "x3" in op
        elif op.startswith("global_store"):
            self.kind = "vstore"; self.rd = flat(R); self.data = set(R[1]); self.wide = "x4" in op or "x3" in op
        elif op.startswith("ds_read") or op.startswith("ds_bpermute") or op.startswith("ds_swizzle"):
            self.kind = "dsread"; self.wr = set(R[0]); self.rd = flat(R[1:])
        elif op.startswith("ds_write") or op.startswith("ds_add"):
            self.kind = "dswrite"; self.rd = flat(R)
        elif op.startswith("s_load") or op in ("s_memtime", "s_memrealtime"):
            self.kind = "smem"; self.wr = set(R[0]); self.rd = flat(R[1:])
        elif op in ("s_waitcnt", "s_nop", "s_barrier", "s_endpgm", "s_sleep", "s_setprio"):
            self.kind = op[2:]
        elif op.startswith("s_cbranch") or op == "s_branch":
            self.kind = "branch"; self.target = ops[0]
            if "vcc" in op: self.rd = {("s", "vcc")}
            if "exec" in op: self.rd = {("s", "exec")}
        elif op.startswith("s_cmp") or op.startswith("s_bitcmp"):
            self.kind = "salu"; self.rd = flat(R)
        elif op.startswith("s_"):
            self.kind = "salu"; self.wr = set(R[0]); self.rd = flat(R[1:])
            if "saveexec" in op: self.wr.add(("s", "exec")); self.rd.add(("s", "exec"))
        elif op.startswith("v_permlane") and "swap" in op:
            self.kind = "valu"; self.wr = flat(R); self.rd = flat(R)
        elif op.startswith("v_"):
            self.kind = "valu"; self.wr = set(R[0]); self.rd = flat(R[1:])
            if op.split("_e32")[0].split("_e64")[0] in RW_DST: self.rd |= set(R[0])
            if op.startswith("v_cndmask") and len(ops) == 3: self.rd.add(("s", "vcc"))
        else:
            raise ValueError("unknown instruction: " + text)
    def states(self):
        if self.kind in ("label", "dir"): return 0
        if self.kind == "nop": return int(self.text.split()[1]) + 1
        return 1

def vec(s): return set(x for x in s if x[0] in "va")
def sca(s): return set(x for x in s if x[0] == "s")

def need(p, c):
    n = 0
    isdot = lambda i: i.op.startswith("v_dot")
    mem = ("vload", "vstore", "dma", "dsread", "dswrite")
    if p.kind == "valu":
        wv = vec(p.wr); ws = sca(p.wr)
        if c.kind == "mfma" and wv & c.rd: n = max(n, 3 if isdot(p) else 2)
        if c.kind == "valu":
            if p.op in TRANS and wv & c.rd: n = max(n, 1)
            if c.op.startswith("v_permlane") and wv & c.rd: n = max(n, 2)
            if (c.op.startswith("v_readfirstlane") or c.op.startswith("v_readlane")) and wv & c.rd: n = max(n, 1)
            if "dpp" in c.text and wv & c.rd: n = max(n, 2)
            if ws & c.rd: n = max(n, 2)
            if isdot(p) and wv & (c.rd | c.wr):
                if not (c.op == p.op and c.wr == p.wr and c.op.startswith("v_dot2c")): n = max(n, 3)
        if c.kind in mem:
            if ws & c.rd: n = max(n, 5)
            if isdot(p) and wv & (c.rd | c.wr): n = max(n, 3)
            if p.op in TRANS and wv & c.rd: n = max(n, 1)
        if c.kind in ("salu", "branch") and ws & c.rd: n = max(n, 1 if c.kind == "branch" else 3)
    if p.kind == "mfma":
        if c.kind == "mfma":
            if p.wr & c.srcab: n = max(n, 12)
            if p.wr & c.srcc and p.wr != c.srcc: n = max(n, 10)
            if p.wr & c.wr and p.wr != c.wr: n = max(n, 10)
        elif c.kind == "valu" or c.kind in mem:
            if p.wr & (c.rd | c.wr): n = max(n, 12)
            if p.srcc & c.wr: n = max(n, 7)
    if p.kind == "vstore" and p.wide and c.kind in ("valu", "mfma", "vload", "dsread") and p.data & c.wr: n = max(n, 2)
    if p.kind == "salu" and ("s", "m0") in p.wr and c.kind == "dma": n = max(n, 1)
    if p.kind == "salu" and ("s", "exec") in p.wr and c.kind == "valu" and ("dpp" in c.text or c.op.startswith("v_permlane")): n = max(n, 1)
    return n

class Asm:
    def __init__(self):
        self.ins = []
        self.vm = []
        self.lg = []
        self.smem = set()
        self.nlabel = 0
        self.auto = True
    def _push(self, i):
        req = 0; dist = 0
        for p in reversed(self.ins[-40:]):
            r = need(p, i) - dist
            if r > req: req = r
            dist += p.states()
            if dist >= 20: break
        while req > 0:
            k = min(req, 16)
            self.ins.append(Ins("s_nop %d" % (k - 1))); req -= k
        self.ins.append(i)
    def _wait(self, vm=None, lg=None):
        parts = []
        if vm is not None:
            vm = min(vm, 63); parts.append("vmcnt(%d)" % vm); self.vm = self.vm[len(self.vm) - vm:] if vm < len(self.vm) else self.vm
            if vm == 0: self.vm = []
        if lg is not None:
            lg = min(lg, 15); parts.append("lgkmcnt(%d)" % lg); self.lg = self.lg[len(self.lg) - lg:] if lg < len(self.lg) else self.lg
            if lg == 0: self.lg = []; self.smem = set()
        self.ins.append(Ins("s_waitcnt " + " ".join(parts)))
    def _cnt(self, fifo, regs):
        n = None
        for k, (dst, tag) in enumerate(fifo):
            if dst & regs: n = len(fifo) - 1 - k
        return n
    def __call__(self, text, cond=False, tag=None):
        for line in text.split("\n"):
            line = line.strip()
            if not line or line.startswith(";"): continue
            self.emit(line, cond, tag)
    def emit(self, text, cond=False, tag=None):
        i = Ins(text, cond, tag)
        if i.kind == "waitcnt":
            m = re.search(r"vmcnt\((\d+)\)", text); vm = int(m.group(1)) if m else None
            m = re.search(r"lgkmcnt\((\d+)\)", text); lg = int(m.group(1)) if m else None
            self._wait(vm, lg); return
        touched = i.rd | i.wr
        vm = self._cnt(self.vm, touched); lg = self._cnt(self.lg, touched)
        if self.smem & touched: lg = 0
        if lg is not None and self.smem: lg = 0
        if vm is not None or lg is not None:
            self._wait(vm, lg)
        self._push(i)
        if not cond:
            if i.kind in ("vload",): self.vm.append((set(i.wr), tag))
            elif i.kind in ("vstore", "dma"): self.vm.append((set(), tag))
            elif i.kind == "dsread": self.lg.append((set(i.wr), tag))
            elif i.kind == "dswrite": self.lg.append((set(), tag))
        if i.kind == "smem": self.smem |= i.wr
        assert len(self.vm) <= 63, "more than 63 vmem ops in flight"
    def wait_tag(self, tag):
        n = None
        for k, (dst, t) in enumerate(self.vm):
            if t == tag: n = len(self.vm) - 1 - k
        if n is not None: self._wait(vm=n)
    def wait_regs(self, *toks):
        regs = set(x for t in toks for x in regs_of(t))
        vm = self._cnt(self.vm, regs); lg = self._cnt(self.lg, regs)
        if lg is not None and self.smem: lg = 0
        if vm is not None or lg is not None: self._wait(vm, lg)
    def wait_lds(self):
        if self.lg or self.smem: self._wait(lg=0)
    def barrier(self):
        self.wait_lds(); self.emit("s_barrier")
    def label(self, name=None):
        if name is None:
            self.nlabel += 1; name = "L%d" % self.nlabel
        return name
    def place(self, name): self.ins.append(Ins(name + ":"))
    def check_branches(self):
        pos = {i.label: k for k, i in enumerate(self.ins) if i.kind == "label"}
        for b, i in enumerate(self.ins):
            if i.kind != "branch": continue
            t = pos[i.target]
            tail = self.ins[max(0, b - 24):b + 1]
            dist0 = 0
            for c in self.ins[t:t + 24]:
                dist = dist0
                for p in reversed(tail):
                    if need(p, c) > dist:
                        raise RuntimeError("hazard across branch %s: %s -> %s" % (i.text, p.text, c.text))
                    dist += p.states()
                    if dist >= 20: break
                dist0 += c.states()
                if dist0 >= 20 or (c.kind == "branch" and c.op == "s_branch"): break
    def text(self):
        self.check_branches()
        return "\n".join(("" if i.kind == "label" else "  ") + i.text for i in self.ins) + "\n"

def V(a, n=1): return "v%d" % a if n == 1 else "v[%d:%d]" % (a, a + n - 1)
def A(a, n=1): return "a%d" % a if n == 1 else "a[%d:%d]" % (a, a + n - 1)
def S(a, n=1): return "s%d" % a if n == 1 else "s[%d:%d]" % (a, a + n - 1)
```

```python
KB = 1024; MB = 1024 * 1024
SG_STRIDE = 2 * MB
O_OFF  = [0, 128 * KB]
X2_OFF = [256 * KB, 368 * KB]
H_OFF  = [480 * KB, 592 * KB]
X1_OFF = [704 * KB, 816 * KB]
X_OFF  = 928 * KB
G_OFF  = [1040 * KB, 1488 * KB]
ST_OFF = 1936 * KB
FL_OFF = 2000 * KB
def st_off(l, kind): return ST_OFF + (l * 3 + kind) * 8 * KB
def fl_off(l, hop): return FL_OFF + (l * 8 + hop) * 128
KV_OFF = 32 * MB
F1_OFF = 40 * MB
H2_OFF = 40 * MB + 256 * KB
STAMP_OFF = 41 * MB
WS_BYTES = 268435456
R0 = 0; R1 = 57344; R2 = 114688
LDS_BYTES = 163840
```

```python
import math
from asmkit import *
from layout import *

def install(Gen):
    import __main__ as M
    G = M if hasattr(M, "sWS") else __import__("gen")
    for n in dir(G):
        if n[0] in "sv" or n in ("T", "OOB", "SPIN", "CSK", "RES", "aCS1", "aCS3", "f2u", "hx"):
            globals()[n] = getattr(G, n)
    for n, f in list(globals().items()):
        if callable(f) and n.startswith("m_"): setattr(Gen, n[2:], f)

KC = 2.0 * math.sqrt(2.0 / math.pi) * math.log2(math.e)
WF, ACT, ACC = 16, 80, 144
XW, XR_ = 222, 225
vTa, vTb = "v226", "v227"
DS = 228

def m_ksplit_addr(self):
    a = self.a
    for jp in (1, 2, 3):
        a("s_xor_b32 %s, %s, %d" % (T[0], sW, jp)); a("s_mul_i32 %s, %s, 6144" % (T[0], T[0])); a("s_add_u32 %s, %s, %d" % (T[0], T[0], R2 + (jp - 1) * 2048))
        a("v_add_u32 %s, %s, %s" % (V(XW + jp - 1), T[0], vL16))
    a("s_mul_i32 %s, %s, 6144" % (T[0], sW)); a("s_add_u32 %s, %s, %d" % (T[0], T[0], R2)); a("v_add_u32 %s, %s, %s" % (V(XR_), T[0], vL16))

def m_pull(self, tag, region, padded=False):
    a = self.a
    a.wait_tag(tag)
    pa, pb = vTa, vTb
    if region:
        pa, pb = "v232", "v233"
        a("v_add_u32 %s, %d, %s" % (pa, R1, vTa)); a("v_add_u32 %s, %d, %s" % (pb, R1, vTb))
    if padded:
        a("v_and_b32 v232, %s, %s" % (hx(~512), vTa)); a("v_and_b32 v233, %s, %s" % (hx(~512), vTb))
    for ks in range(8 if padded else 7):
        off = (28 * (ks >> 1) + 16 * (ks & 1)) * 128 if padded else ks * 2048
        for f in range(2):
            d = WF + (2 * ks + f) * 4
            a("ds_read_b64_tr_b16 %s, %s offset:%d" % (V(d, 2), (pa, pb)[f], off))
            second = ("v232", "v233")[f] if (padded and ks & 1) else (pa, pb)[f]
            a("ds_read_b64_tr_b16 %s, %s offset:%d" % (V(d + 2, 2), second, off + 1024))

def m_xchg_write(self, acc, t):
    at = []
    for jp in (1, 2, 3):
        for p in range(2):
            at.append(("ds_write_b128 %s, %s offset:%d" % (V(XW + jp - 1), V(acc + 32 * t + 8 * jp + 4 * p, 4), t * 24576 + 1024 * p), None))
    return at
def m_xchg_read(self, tmp, t):
    for g in range(6): self.a("ds_read_b128 %s, %s offset:%d" % (V(tmp + 4 * g, 4), V(XR_), t * 24576 + 1024 * g))
def m_xchg_add(self, acc, tmp, t):
    for k in range(3):
        for p in range(4): self.a("v_pk_add_f32 %s, %s, %s" % (V(acc + 32 * t + 2 * p, 2), V(acc + 32 * t + 2 * p, 2), V(tmp + 8 * k + 2 * p, 2)))

def m_ksplit_tail(self, acc, tmp0, tmp1, epi):
    a = self.a
    a.barrier()
    self.xchg_read(tmp0, 0)
    self.put(self.xchg_write(acc, 1))
    self.xchg_add(acc, tmp0, 0)
    epi(0, acc, tmp0)
    a.barrier()
    self.xchg_read(tmp1, 1)
    self.xchg_add(acc, tmp1, 1)
    epi(1, acc + 32, tmp1)

def m_ksplit(self, nks, vad, soff, extra, epi, check=False):
    a = self.a
    def load(t, i, cond=False):
        if i == 4: a("s_add_u32 %s, %s, 4096" % (T[19], soff[t]))
        a("buffer_load_dwordx4 %s, %s, %s, %s offen offset:%d sc1" % (V(ACT + 32 * t + 4 * i, 4), vad[t], sWS, soff[t] if i < 4 else T[19], 1024 * (i % 4)), cond=cond)
    for t in range(2):
        for i in range(nks): load(t, i)
    done = [0]; per = len(extra) / float(2 * nks)
    if check: a("s_mov_b32 %s, %d" % (sSPIN, SPIN))
    for t in range(2):
        wr = self.xchg_write(ACC, 0) if t == 1 else []
        Lr = a.label()
        if check:
            Lok = a.label()
            a.wait_regs(V(ACT + 32 * t, 4 * nks))
            a.place(Lr)
            b = ACT + 32 * t
            a("v_max3_u32 v238, %s, %s, %s" % (V(b), V(b + 1), V(b + 2)))
            a("v_max_u32 v238, v238, %s" % V(b + 3))
            for k in range(4, 4 * nks, 2): a("v_max3_u32 v238, v238, %s, %s" % (V(b + k), V(b + k + 1)))
            a("v_cmp_eq_u32 vcc, -1, v238")
            a("s_cbranch_vccz %s" % Lok)
            for i in range(nks): load(t, i, True)
            a("s_sub_u32 %s, %s, 1" % (sSPIN, sSPIN)); a("s_cbranch_scc1 L_abort")
            a.ins.append(Ins("s_waitcnt vmcnt(0)"))
            a("s_branch %s" % Lr)
            a.place(Lok)
        for i in range(nks):
            for f in range(2):
                self.mfma(ACC + 32 * t + 16 * f, V(WF + (2 * i + f) * 4, 4), V(ACT + 32 * t + 4 * i, 4), i > 0)
                if f == 0:
                    want = int(math.ceil(per * (t * nks + i + 1))); self.put(extra[done[0]:want]); done[0] = max(done[0], want)
                if t == 1 and 2 * i + f >= 5 and wr: self.put([wr.pop(0)])
        assert not wr
    self.ksplit_tail(ACC, ACT, ACT + 32, epi)

def m_row_stats(self, x, vd, tmp):
    a = self.a
    a("v_pk_add_f32 %s, %s, %s" % (V(tmp, 2), V(x, 2), V(x + 2, 2)))
    a("v_pk_mul_f32 %s, %s, %s" % (V(tmp + 2, 2), V(x, 2), V(x, 2)))
    a("v_pk_add_f32 %s, %s, %s" % (V(tmp, 2), V(tmp, 2), V(x + 4, 2)))
    a("v_pk_fma_f32 %s, %s, %s, %s" % (V(tmp + 2, 2), V(x + 2, 2), V(x + 2, 2), V(tmp + 2, 2)))
    a("v_pk_add_f32 %s, %s, %s" % (V(tmp, 2), V(tmp, 2), V(x + 6, 2)))
    a("v_pk_fma_f32 %s, %s, %s, %s" % (V(tmp + 2, 2), V(x + 4, 2), V(x + 4, 2), V(tmp + 2, 2)))
    a("v_add_f32 %s, %s, %s" % (V(tmp), V(tmp), V(tmp + 1)))
    a("v_pk_fma_f32 %s, %s, %s, %s" % (V(tmp + 2, 2), V(x + 6, 2), V(x + 6, 2), V(tmp + 2, 2)))
    a("v_add_f32 %s, %s, %s" % (V(tmp + 2), V(tmp + 2), V(tmp + 3)))
    a("v_permlane32_swap_b32 %s, %s" % (V(tmp), V(tmp + 2)))
    a("v_add_f32 %s, %s, %s" % (vd, V(tmp), V(tmp + 2)))
def m_stats_out(self):
    a = self.a
    a("s_mul_i32 %s, %s, 6144" % (T[0], sW)); a("s_add_u32 %s, %s, %d" % (T[0], T[0], R2 + 24576)); a("v_add_u32 v238, %s, %s" % (T[0], vL4))
    a("ds_write2st64_b32 v238, v236, v237 offset0:0 offset1:1")
def m_own_frag_off(self, dst, base):
    a = self.a
    a("s_lshl_b32 %s, %s, 2" % (dst[0], sC)); a("s_add_u32 %s, %s, %s" % (dst[0], dst[0], sW)); a("s_lshl_b32 %s, %s, 10" % (dst[0], dst[0]))
    a("s_add_u32 %s, %s, %s" % (dst[0], dst[0], sTB)); a("s_add_u32 %s, %s, %d" % (dst[0], dst[0], base))
    a("s_add_u32 %s, %s, %d" % (dst[1], dst[0], 28 * KB))
def m_quarter_off(self, dst, base):
    a = self.a
    a("s_mul_i32 %s, %s, %d" % (dst[0], sW, 7 * KB)); a("s_add_u32 %s, %s, %s" % (dst[0], dst[0], sTB)); a("s_add_u32 %s, %s, %d" % (dst[0], dst[0], base))
    a("s_add_u32 %s, %s, %d" % (dst[1], dst[0], 28 * KB))
def m_pack_store(self, x, tmp, soff, vad=None):
    a = self.a
    for k in range(4): a("v_cvt_pk_bf16_f32 %s, %s, %s" % (V(tmp + k), V(x + 2 * k), V(x + 2 * k + 1)))
    self.mstore(["buffer_store_dwordx4 %s, %s, %s, %s offen" % (V(tmp, 4), vad or vL16, sWS, soff)], tag="out")
def m_group_poll(self, l, hop, name):
    a = self.a
    a("s_mul_i32 %s, %s, 7" % (T[0], sU)); self.flag_addr("v238", 7, T[0])
    a("s_add_u32 %s, %s, %d" % (T[1], sSG, fl_off(l, hop)))
    self.poll("v238", T[1], "v239")
    self.stamp(name)

def gelu_consts(a, vr, cA, cB, cI):
    a("v_rcp_f32 %s, %s" % (V(cI), vr))
    a("v_mul_f32 %s, %s, %s" % (V(cA), hx(f2u(-KC)), vr))
    a("v_mul_f32 %s, %s, %s" % (V(cB), vr, vr))
    a("v_mul_f32 %s, %s, %s" % (V(cB), V(cB), V(cA)))
    a("v_mul_f32 %s, %s, %s" % (V(cB), hx(f2u(0.044715)), V(cB)))
def gelu_pk(a, x, n, tmp, cA, cB, cI):
    for k in range(0, n, 2): a("v_pk_mul_f32 %s, %s, %s" % (V(tmp + k, 2), V(x + k, 2), V(x + k, 2)))
    for k in range(0, n, 2): a("v_pk_fma_f32 %s, %s, %s, %s op_sel_hi:[1,0,0]" % (V(tmp + k, 2), V(tmp + k, 2), V(cB, 2), V(cA, 2)))
    for k in range(0, n, 2): a("v_pk_mul_f32 %s, %s, %s" % (V(tmp + k, 2), V(tmp + k, 2), V(x + k, 2)))
    for k in range(n): a("v_exp_f32 %s, %s" % (V(tmp + k), V(tmp + k)))
    for k in range(0, n, 2): a("v_pk_fma_f32 %s, %s, %s, %s op_sel_hi:[1,0,0]" % (V(tmp + k, 2), V(tmp + k, 2), V(cI, 2), V(cI, 2)))
    for k in range(n): a("v_rcp_f32 %s, %s" % (V(tmp + k), V(tmp + k)))
    for k in range(0, n, 2): a("v_pk_mul_f32 %s, %s, %s" % (V(x + k, 2), V(x + k, 2), V(tmp + k, 2)))

def m_cs3_part(self, region, dst, tag):
    a = self.a
    a.wait_tag(tag)
    self.tr_addr128("v232", "v233", "v234", False, sQ1 if region else sQ0)
    for ks in range(7):
        for f in range(2):
            d = ACC + (2 * ks + f) * 4
            a("ds_read_b64_tr_b16 %s, %s offset:%d" % (V(d, 2), ("v232", "v233")[f], ks * 2048))
            a("ds_read_b64_tr_b16 %s, %s offset:%d" % (V(d + 2, 2), ("v232", "v233")[f], ks * 2048 + 1024))
    a("v_mov_b32 %s, 0" % V(dst)); a("v_mov_b32 %s, 0" % V(dst + 1))
    for ks in range(7):
        for k in range(4):
            for f in range(2): a("v_dot2c_f32_bf16 %s, %s, %s" % (V(dst + f), sONES, V(ACC + (2 * ks + f) * 4 + k)))

def m_after_attention(self, l):
    a = self.a
    Lidle, Ljoin = a.label(), a.label()
    sA, sO = (T[16], T[17]), (T[20], T[21])
    self.tr_addr128(vTa, vTb, "v230", True, sQ0)
    self.pull("wo", 0, padded=True)
    self.ksplit_addr()
    self.dma_src128(DS, "v238", 896)
    self.publish(l, 2, 232)
    self.checkpoint("s2_%d" % l)
    a("s_cmp_ge_u32 %s, 14" % sJ)
    a("s_cbranch_scc1 %s" % (Lidle if l == 0 and not (self.stop or "").endswith("_0") else "L_end"))
    a("s_lshl_b32 %s, %s, 16" % (sA[0], sU)); a("s_lshl_b32 %s, %s, 13" % (T[0], sW)); a("s_add_u32 %s, %s, %s" % (sA[0], sA[0], T[0]))
    a("s_add_u32 %s, %s, %s" % (sA[0], sA[0], sSG))
    if O_OFF[l]: a("s_add_u32 %s, %s, %d" % (sA[0], sA[0], O_OFF[l]))
    a("s_add_u32 %s, %s, %d" % (sA[1], sA[0], 32 * KB))
    self.own_frag_off(sO, X2_OFF[l])
    self.flag_addr("v238", 16, 0); a("s_add_u32 %s, %s, %d" % (T[1], sSG, fl_off(l, 2)))
    a.wait_lds()
    self.poll("v238", T[1], "v239"); self.stamp("h2_%d" % l)
    def epi3(t, x, tmp):
        r = RES + 8 * t
        for p in range(4): a("v_pk_add_f32 %s, %s, %s" % (V(r + 2 * p, 2), V(r + 2 * p, 2), V(x + 2 * p, 2)))
        self.pack_store(r, tmp, sO[t])
        self.row_stats(r, V(236 + t), tmp + 4)
    self.ksplit(8, (vL16, vL16), sA, self.dma_atoms(sW2, DS, 896, (sWROW, 0), (sQ0, 0), T[18], "w2"), epi3)
    self.stats_out()
    self.pull("w1", 1)
    if l == 0:
        a("v_mov_b32 v234, 0\nv_mov_b32 v235, 0")
        for ks in range(7):
            for k in range(4):
                for f in range(2): a("v_dot2c_f32_bf16 %s, %s, %s" % (V(234 + f), sONES, V(WF + (2 * ks + f) * 4 + k)))
        a("v_permlane32_swap_b32 v234, v235"); a("v_add_f32 v234, v234, v235")
        a("s_lshl_b32 %s, %s, 6" % (T[0], sW)); a("v_xor_b32 v235, %s, %s" % (T[0], vL4))
        a("s_mul_i32 %s, %s, 6144" % (T[0], sW)); a("s_add_u32 %s, %s, %d" % (T[0], T[0], R2 + 24576 + 1024)); a("v_add_u32 v235, %s, v235" % T[0])
        a("ds_write_b32 v235, v234")
    self.dma_src128(DS, "v238", 3584)
    self.publish(l, 3, 232, stat=0)
    self.checkpoint("s3_%d" % l)
    C1 = 208
    if l == 0:
        a("v_lshrrev_b32 v238, 5, %s" % vLANE); a("v_lshlrev_b32 v238, 4, v238")
        a("s_lshl_b32 %s, %s, 6" % (T[0], sW)); a("s_add_u32 %s, %s, %d" % (T[0], T[0], R2 + 24576 + 1024)); a("v_add_u32 v238, %s, v238" % T[0])
        for s in range(4):
            for p in range(2): a("ds_read_b128 %s, v238 offset:%d" % (V(ACC + 8 * s + 4 * p, 4), 6144 * s + 32 * p))
        for p in range(4):
            a("v_pk_add_f32 %s, %s, %s" % (V(ACC + 2 * p, 2), V(ACC + 2 * p, 2), V(ACC + 8 + 2 * p, 2)))
            a("v_pk_add_f32 %s, %s, %s" % (V(ACC + 16 + 2 * p, 2), V(ACC + 16 + 2 * p, 2), V(ACC + 24 + 2 * p, 2)))
            a("v_pk_add_f32 %s, %s, %s" % (V(C1 + 2 * p, 2), V(ACC + 2 * p, 2), V(ACC + 16 + 2 * p, 2)))
        for k in range(8): a("v_accvgpr_write_b32 %s, %s" % (A(aCS1 + k), V(C1 + k)))
    else:
        for k in range(8): a("v_accvgpr_read_b32 %s, %s" % (V(C1 + k), A(aCS1 + k)))
    self.quarter_off(sA, X2_OFF[l])
    sJJ, sSH = T[2], T[3]
    a("s_lshl_b32 %s, %s, 2" % (sJJ, sC)); a("s_add_u32 %s, %s, %s" % (sJJ, sJJ, sW))
    a("s_mov_b32 %s, 1" % sSH)
    for lim, sh in ((7, -1), (14, 2), (21, -2)):
        a("s_cmp_ge_u32 %s, %d" % (sJJ, lim)); a("s_cselect_b32 %s, %d, %s" % (sSH, sh, sSH))
    a("s_lshl_b32 %s, %s, 10" % (sJJ, sJJ))
    a("s_add_u32 %s, %s, %s" % (sO[0], sJJ, sTB)); a("s_add_u32 %s, %s, %d" % (sO[0], sO[0], H_OFF[l]))
    a("s_lshl_b32 %s, %s, 1" % (T[0], sR)); a("s_add_u32 %s, %s, %s" % (T[0], T[0], sU))
    a("s_cmp_gt_i32 %s, 0" % sSH); a("s_cselect_b32 %s, 1, -1" % T[1]); a("s_add_u32 %s, %s, %s" % (T[0], T[0], T[1]))
    a("s_lshr_b32 %s, %s, 3" % (T[1], T[0])); a("s_lshl_b32 %s, %s, 15" % (T[1], T[1]))
    a("s_and_b32 %s, %s, 7" % (T[4], T[0])); a("s_lshl_b32 %s, %s, 7" % (T[4], T[4])); a("s_add_u32 %s, %s, %s" % (T[1], T[1], T[4]))
    a("s_add_u32 %s, %s, %s" % (T[1], T[1], sJJ)); a("s_add_u32 %s, %s, %d" % (T[1], T[1], H2_OFF + l * 128 * KB))
    a("s_cmp_lt_u32 %s, 32" % T[0]); a("s_cselect_b32 %s, %s, %s" % (sO[1], T[1], hx(OOB)))
    a("v_and_b32 v232, 31, %s" % vLANE); a("v_lshrrev_b32 v233, 5, %s" % vLANE); a("v_mov_b32 v238, %s" % hx(OOB))
    for t in range(2):
        a("v_add_u32 v234, %s, v232" % sSH)
        if t: a("v_add_u32 v234, 32, v234")
        a("v_lshrrev_b32 v235, 5, v234"); a("v_mul_u32_u24 v235, %d, v235" % (28 * KB))
        a("v_and_b32 v239, 31, v234"); a("v_lshl_add_u32 v239, v233, 5, v239"); a("v_lshl_add_u32 v235, v239, 4, v235")
        a("v_cmp_gt_u32 vcc, 64, v234")
        a("v_and_b32 v234, 1, v234"); a("v_lshl_add_u32 v234, v233, 1, v234"); a("v_lshlrev_b32 v234, 4, v234")
        a("v_cndmask_b32 %s, v238, v235, vcc" % V(216 + t))
        a("v_cndmask_b32 %s, v234, v238, vcc" % V(218 + t))
    SL = (72, 136)
    a("s_lshl_b32 %s, %s, 12" % (T[10], sU)); a("s_add_u32 %s, %s, %s" % (T[10], T[10], sSG)); a("s_add_u32 %s, %s, %d" % (T[10], T[10], st_off(l, 0)))
    a("s_add_u32 %s, %s, 2048" % (T[11], T[10]))
    a("s_lshl_b32 %s, %s, 7" % (T[12], sJ)); a("s_mul_i32 %s, %s, %d" % (T[0], sW, 112 * 3584)); a("s_add_u32 %s, %s, %s" % (T[12], T[12], T[0]))
    a.wait_lds()
    self.group_poll(l, 3, "h3_%d" % l)
    SL = (72, 232)
    def epi4(t, x, tmp):
        vs, vq = V(tmp + 8), V(tmp + 9)
        self.stat_reduce(SL[t], T[10 + t], vs, vq)
        m, r1 = V(vM0 + t), V(vR0 + t)
        self.finish_stats(vs, vq, m, vs)
        a("v_add_f32 %s, %s, %s" % (vq, hx(f2u(1e-5)), vs)); a("v_rsq_f32 %s, %s" % (r1, vq))
        a("v_mov_b32 %s, %s" % (V(tmp + 10), m))
        a("v_mul_f32 %s, %s, %s" % (vs, vs, r1)); a("v_mul_f32 %s, %s, %s" % (vs, vs, r1))
        a("v_add_f32 %s, %s, %s" % (vs, hx(f2u(1e-5)), vs)); a("v_rsq_f32 %s, %s" % (vs, vs))
        for p in range(4): a("v_pk_fma_f32 %s, %s, %s, %s op_sel_hi:[1,0,1] neg_lo:[0,1,0] neg_hi:[0,1,0]" % (V(x + 2 * p, 2), V(C1 + 2 * p, 2), V(tmp + 10, 2), V(x + 2 * p, 2)))
        a("v_mul_f32 %s, %s, %s" % (vs, vs, r1))
        gelu_consts(a, vs, tmp + 12, tmp + 14, tmp + 16)
        gelu_pk(a, x, 8, tmp, tmp + 12, tmp + 14, tmp + 16)
        self.pack_store(x, x + 8, sO[0], V(216 + t))
        if t == 1:
            for tt in range(2): a("buffer_store_dwordx4 %s, %s, %s, %s offen sc1" % (V(ACC + 32 * tt + 8, 4), V(218 + tt), sWS, sO[1]))
    extra = self.stat_loads(SL[0], T[10]) + self.stat_loads(SL[1], T[11]) + self.dma_atoms(sW3, DS, 3584, (T[12], 0), (sQ1, 0), T[18], "w3a")
    self.ksplit(7, (vL16, vL16), sA, extra, epi4)
    self.pull("w2", 0)
    if l == 0: self.cs3_part(1, 14, "w3a")
    self.publish(l, 4, 232)
    self.checkpoint("s4_%d" % l)
    self.quarter_off(sA, H_OFF[l]); self.own_frag_off(sO, X1_OFF[l])
    a("s_lshl_b32 %s, %s, 1" % (T[0], sR)); a("s_add_u32 %s, %s, %s" % (T[0], T[0], sU))
    a("s_lshr_b32 %s, %s, 3" % (T[1], T[0])); a("s_lshl_b32 %s, %s, 15" % (T[1], T[1]))
    a("s_and_b32 %s, %s, 7" % (T[4], T[0])); a("s_lshl_b32 %s, %s, 7" % (T[4], T[4])); a("s_add_u32 %s, %s, %s" % (T[1], T[1], T[4]))
    a("s_mul_i32 %s, %s, %d" % (T[4], sW, 7 * KB)); a("s_add_u32 %s, %s, %s" % (T[1], T[1], T[4])); a("s_add_u32 %s, %s, %d" % (T[1], T[1], H2_OFF + l * 128 * KB))
    a("s_lshr_b32 %s, %s, 1" % (T[2], sW)); a("s_add_u32 %s, %s, 1" % (T[2], T[2]))
    a("s_and_b32 %s, %s, 1" % (T[3], sW))
    a("v_and_b32 v232, 31, %s" % vLANE); a("v_lshrrev_b32 v233, 5, %s" % vLANE)
    a("v_and_b32 v234, 1, v232"); a("v_lshl_add_u32 v234, v233, 1, v234"); a("v_lshlrev_b32 v234, 4, v234")
    for t in range(2):
        a("s_sub_u32 %s, %s, %s" % (T[4], T[1], sA[t]))
        a("s_cmp_eq_u32 %s, %d" % (T[0], 31 * t)); a("s_cselect_b32 %s, %s, %s" % (T[4], hx(OOB), T[4]))
        a("v_add_u32 v235, %s, v234" % T[4])
        a("s_cmp_eq_u32 %s, %d" % (T[3], t)); a("s_cselect_b32 %s, %s, 0" % (T[4], T[2]))
        if t: a("v_sub_u32 v232, 31, v232")
        a("v_cmp_gt_u32 vcc, %s, v232" % T[4])
        a("v_cndmask_b32 %s, %s, v235, vcc" % (V(216 + t), vL16))
    a.wait_lds()
    self.group_poll(l, 4, "h4_%d" % l)
    def epi5(t, x, tmp):
        r = RES + 8 * t
        a("v_mov_b32 %s, %s" % (V(tmp + 8), V(vM0 + t))); a("v_mov_b32 %s, %s" % (V(tmp + 10), V(vR0 + t)))
        for p in range(4): a("v_pk_add_f32 %s, %s, %s op_sel_hi:[1,0] neg_lo:[0,1] neg_hi:[0,1]" % (V(tmp + 2 * p, 2), V(r + 2 * p, 2), V(tmp + 8, 2)))
        for p in range(4): a("v_pk_fma_f32 %s, %s, %s, %s op_sel_hi:[1,0,1]" % (V(x + 2 * p, 2), V(tmp + 2 * p, 2), V(tmp + 10, 2), V(x + 2 * p, 2)))
        self.pack_store(x, tmp + 12, sO[t])
        self.row_stats(x, V(236 + t), tmp)
        for p in range(4): a("v_pk_add_f32 %s, %s, %s" % (V(r + 2 * p, 2), V(r + 2 * p, 2), V(x + 2 * p, 2)))
    self.ksplit(7, ("v216", "v217"), sA, self.dma_atoms(sW3, DS, 3584, (T[12], 1792), (sQ0, 0), T[18], "w3b"), epi5, check=True)
    self.stats_out()
    if l == 0:
        self.cs3_part(0, 236, "w3b")
        a("s_mul_i32 %s, %s, 6144" % (T[0], sW)); a("s_add_u32 %s, %s, %d" % (T[0], T[0], R2 + 24576 + 1024)); a("v_add_u32 v238, %s, %s" % (T[0], vL16))
        a("v_mov_b32 v234, v14\nv_mov_b32 v235, v15")
        a("ds_write_b128 v238, v[234:237]")
    a.wait_tag("w3b")
    self.publish(l, 5, 232, stat=1)
    self.checkpoint("s5_%d" % l)
    self.s6(l)
    self.s7(l)
    if l == 0:
        a("s_branch %s" % Ljoin)
        a.place(Lidle)
        save = (a.vm, a.lg); a.vm, a.lg = [], []
        a.ins.append(Ins("s_waitcnt vmcnt(0) lgkmcnt(0)"))
        a("s_barrier")
        self.put(self.wqkv_reload())
        a("s_waitcnt vmcnt(0)")
        a("s_barrier")
        self.flag_addr("v238", 14, 0); a("s_add_u32 %s, %s, %d" % (T[1], sSG, fl_off(l, 6)))
        self.poll("v238", T[1], "v239", sleep=8)
        a.vm, a.lg = save
        a.place(Ljoin)

def m_wqkv_reload(self):
    a = self.a
    self.wq_src("v231", "v238"); a("s_lshl_b32 %s, %s, 10" % (T[10], sW))
    at = []
    for mat in (1, 2, 0):
        for b in range(7): at += self.wq_dma("v231", mat, b, T[10], "wqkv")
    return at

def m_s6(self, l):
    a = self.a
    XF, AC, WR, BM, cA, cB, cI, TM = 16, 128, 192, 216, 222, 224, 226, 232
    ta, tb, tc, td = "v228", "v229", "v230", "v231"
    NW = 6
    if l == 0:
        a("v_add_u32 v238, %d, %s" % (R2 + 24576 + 1024, vL16))
        for s in range(4): a("ds_read_b128 %s, v238 offset:%d" % (V(AC + 4 * s, 4), 6144 * s))
        for p in range(2):
            a("v_pk_add_f32 %s, %s, %s" % (V(AC + 2 * p, 2), V(AC + 2 * p, 2), V(AC + 4 + 2 * p, 2)))
            a("v_pk_add_f32 %s, %s, %s" % (V(AC + 8 + 2 * p, 2), V(AC + 8 + 2 * p, 2), V(AC + 12 + 2 * p, 2)))
            a("v_pk_add_f32 %s, %s, %s" % (V(AC + 2 * p, 2), V(AC + 2 * p, 2), V(AC + 8 + 2 * p, 2)))
        for q in range(4):
            self.cs_frag("v238", "v239", V(AC + q), V(AC + 4))
            a("v_accvgpr_write_b32 %s, v238" % A(aCS3 + 2 * q)); a("v_accvgpr_write_b32 %s, v239" % A(aCS3 + 2 * q + 1))
    self.tr_addr128(tc, td, "v238", False, 0)
    a("v_add_u32 %s, %d, %s" % (ta, R1, tc)); a("v_add_u32 %s, %d, %s" % (tb, R1, td))
    ad = (ta, tb, tc, td)
    seq = [(q, ks) for ks in range(28) for q in (0, 1)] + [(2, ks) for ks in range(28)] + [(3, ks) for ks in range(28)]
    def rd(n):
        q, ks = seq[n]; d = WR + 4 * (n % NW)
        a("ds_read_b64_tr_b16 %s, %s offset:%d" % (V(d, 2), ad[q], ks * 2048)); a("ds_read_b64_tr_b16 %s, %s offset:%d" % (V(d + 2, 2), ad[q], ks * 2048 + 1024))
    D = NW - 1
    for n in range(D): rd(n)
    a("s_lshr_b32 %s, %s, 1" % (T[0], sW)); a("s_mul_i32 %s, %s, 7" % (T[0], T[0])); self.flag_addr("v238", 7, T[0])
    a("s_add_u32 %s, %s, %d" % (T[1], sSG, fl_off(l, 5)))
    a("s_mul_i32 %s, %s, %d" % (T[3], sW, 28 * KB)); a("s_add_u32 %s, %s, %s" % (T[3], T[3], sSG)); a("s_add_u32 %s, %s, %d" % (T[3], T[3], X1_OFF[l]))
    a("s_lshl_b32 %s, %s, 11" % (T[4], sW)); a("s_add_u32 %s, %s, %s" % (T[4], T[4], sSG)); a("s_add_u32 %s, %s, %d" % (T[4], T[4], st_off(l, 1)))
    a("s_mul_i32 %s, %s, %d" % (T[6], sW, 112 * KB)); a("s_lshl_b32 %s, %s, 12" % (T[7], sJ)); a("s_add_u32 %s, %s, %s" % (T[6], T[6], T[7]))
    a("s_add_u32 %s, %s, %s" % (T[6], T[6], sSG)); a("s_add_u32 %s, %s, %d" % (T[6], T[6], G_OFF[l])); a("s_add_u32 %s, %s, %d" % (T[7], T[6], 56 * KB))
    self.poll("v238", T[1], "v239"); self.stamp("h5_%d" % l)
    for ks in range(28):
        if ks and ks % 4 == 0: a("s_add_u32 %s, %s, 4096" % (T[3], T[3]))
        a("buffer_load_dwordx4 %s, %s, %s, %s offen offset:%d sc1" % (V(XF + 4 * ks, 4), vL16, sWS, T[3], 1024 * (ks % 4)))
    self.put(self.stat_loads(AC + 32, T[4]))
    def store(q):
        x = AC + 16 * q
        self.mstore(["buffer_store_dwordx4 %s, %s, %s, %s offen offset:%d" % (V(x + 8 * f, 4), vL16, sWS, T[6 + (q >> 1)], 2048 * (q & 1) + 1024 * f) for f in range(2)], tag="out")
    def shadow_ops(q):
        x = AC + 16 * q; ops = []
        for g in range(0, 16, 4):
            t = [V(TM + (g & 4) + k) for k in range(4)]; xs = [V(x + g + k) for k in range(4)]
            ops += [("v_mul_f32 %s, %s, %s" % (t[k], xs[k], xs[k]), 4) for k in range(4)]
            ops += [("v_fma_f32 %s, %s, %s, %s" % (t[k], t[k], V(cB), V(cA)), 4) for k in range(4)]
            ops += [("v_mul_f32 %s, %s, %s" % (t[k], t[k], xs[k]), 4) for k in range(4)]
            ops += [("v_exp_f32 %s, %s" % (t[k], t[k]), 8) for k in range(4)]
            ops += [("v_fma_f32 %s, %s, %s, %s" % (t[k], t[k], V(cI), V(cI)), 4) for k in range(4)]
            ops += [("v_rcp_f32 %s, %s" % (t[k], t[k]), 8) for k in range(4)]
            ops += [("v_mul_f32 %s, %s, %s" % (xs[k], xs[k], t[k]), 4) for k in range(4)]
            o = x + (g & 8) + (g & 4) // 2
            ops += [("v_cvt_pk_bf16_f32 %s, %s, %s" % (V(o + k), xs[2 * k], xs[2 * k + 1]), 4) for k in range(2)]
        return ops
    fill = []; budget = [0.0]
    def fix(q): self.mfma(AC + 16 * q, A(aCS3 + 4 * (q >> 1), 4), V(BM + (0 if q & 1 else 2), 4), True)
    for n, (q, ks) in enumerate(seq):
        if n == 56:
            self.stat_reduce(AC + 32, T[4], "v238", "v239")
            self.finish_stats("v238", "v239", V(TM), "v238")
            a("v_add_f32 v238, %s, v238" % hx(f2u(1e-5))); a("v_rsq_f32 v238, v238")
            self.mean_frag(BM, V(TM), "v239")
            fix(0); fix(1)
            gelu_consts(a, "v238", cA, cB, cI)
        if n in (56, 84):
            fill = shadow_ops(q - 2); tot = sum(c for _, c in fill); budget[0] = 0.0
        self.mfma(AC + 16 * q, V(WR + 4 * (n % NW), 4), V(XF + 4 * ks, 4), ks > 0)
        if n + D < len(seq): rd(n + D)
        if fill and not (n in (56, 57)):
            budget[0] += tot / 26.0
            while fill and budget[0] >= fill[0][1] - 2:
                t, c = fill.pop(0); a(t); budget[0] -= c
        if n in (83, 111):
            fix(q)
            for t, c in fill: a(t)
            fill = []
            store(q - 2)
    for q in (2, 3):
        x = AC + 16 * q
        gelu_pk(a, x, 16, XF, cA, cB, cI)
        for f in range(2):
            for k in range(4): a("v_cvt_pk_bf16_f32 %s, %s, %s" % (V(x + 8 * f + k), V(x + 8 * f + 2 * k), V(x + 8 * f + 2 * k + 1)))
        store(q)
    self.ksplit_addr()
    self.publish(l, 6, 232)
    self.checkpoint("s6_%d" % l)

def m_s7(self, l):
    a = self.a
    AC, RG, NR = 16, 80, 35
    order = [(ks, t) for ks in range(21) for t in range(2)] + [(ks, 0) for ks in range(21, 28)] + [(ks, 1) for ks in range(21, 28)]
    sA = (T[16], T[17]); sO = (T[20], T[21])
    a("s_mul_i32 %s, %s, %d" % (sA[0], sU, 224 * KB)); a("s_mul_i32 %s, %s, %d" % (T[0], sW, 14 * KB)); a("s_add_u32 %s, %s, %s" % (sA[0], sA[0], T[0]))
    a("s_add_u32 %s, %s, %s" % (sA[0], sA[0], sSG)); a("s_add_u32 %s, %s, %d" % (sA[0], sA[0], G_OFF[l]))
    extra = []
    if l == 0:
        self.own_frag_off(sO, X_OFF)
        extra = self.wqkv_reload()
    else:
        a("v_and_b32 v232, 31, %s" % vLANE); a("v_mul_u32_u24 v232, 896, v232")
        a("v_lshrrev_b32 v233, 5, %s" % vLANE); a("v_lshl_add_u32 v232, v233, 4, v232")
        a("s_lshl_b32 %s, %s, 1" % (T[0], sR)); a("s_add_u32 %s, %s, %s" % (T[0], T[0], sU)); a("s_mul_i32 %s, %s, %d" % (T[0], T[0], 64 * 896))
        a("s_lshl_b32 %s, %s, 7" % (T[1], sC)); a("s_add_u32 %s, %s, %s" % (T[0], T[0], T[1]))
        a("s_lshl_b32 %s, %s, 5" % (T[1], sW)); a("s_add_u32 %s, %s, %s" % (sO[0], T[0], T[1]))
        a("s_add_u32 %s, %s, %d" % (sO[1], sO[0], 32 * 896))
    self.flag_addr("v238", 14, 0); a("s_add_u32 %s, %s, %d" % (T[1], sSG, fl_off(l, 6)))
    self.poll("v238", T[1], "v239"); self.stamp("h6_%d" % l)
    def load(n):
        ks, t = order[n]
        off = t * 112 * KB + (ks // 14) * 56 * KB + (ks % 14) * KB
        a("s_add_u32 %s, %s, %d" % (T[19], sA[0], off))
        a("buffer_load_dwordx4 %s, %s, %s, %s offen sc1" % (V(RG + 4 * (n % NR), 4), vL16, sWS, T[19]))
    D = 20
    for n in range(D): load(n)
    wr = self.xchg_write(AC, 0)
    ex0 = len(order) - D; per = len(extra) / float(D); done = 0
    for n, (ks, t) in enumerate(order):
        for f in range(2):
            self.mfma(AC + 32 * t + 16 * f, A((2 * ks + f) * 4, 4), V(RG + 4 * (n % NR), 4), ks > 0)
            if f == 0 and n + D < len(order): load(n + D)
            if f == 0 and n >= ex0:
                want = int(math.ceil(per * (n - ex0 + 1))); self.put(extra[done:want]); done = max(done, want)
            if n >= 49 and 2 * (n - 49) + f >= 5 and wr: self.put([wr.pop(0)])
    def epi7(t, x, tmp):
        r = RES + 8 * t
        for p in range(4): a("v_pk_add_f32 %s, %s, %s" % (V(r + 2 * p, 2), V(r + 2 * p, 2), V(x + 2 * p, 2)))
        if l == 0:
            self.pack_store(r, tmp, sO[t])
            self.row_stats(r, V(236 + t), tmp + 4)
        else:
            for k in range(4): a("v_cvt_pk_bf16_f32 %s, %s, %s" % (V(tmp + k), V(r + 2 * k), V(r + 2 * k + 1)))
            a("v_permlane32_swap_b32 %s, %s" % (V(tmp), V(tmp + 2))); a("v_permlane32_swap_b32 %s, %s" % (V(tmp + 1), V(tmp + 3)))
            a("buffer_store_dwordx4 %s, v232, %s, %s offen" % (V(tmp, 4), sOUT, sO[t]))
    self.ksplit_tail(AC, RG + 88, RG + 112, epi7)
    if l == 0:
        self.stats_out()
        a.wait_tag("wqkv")
        self.publish(l, 7, 232, stat=2)
    self.checkpoint("s7_%d" % l)
```

```python
import sys, math, struct
from asmkit import *
from layout import *

NAME = "interleave_layers__mha_block__mixer_s_mlp__prompt"
def f2u(x): return struct.unpack("<I", struct.pack("<f", x))[0]
def hx(x): return "0x%x" % (x & 0xffffffff)

sX, sWQ, sWO, sW1, sW2, sW3, sW4, sOUT, sDBG, sWS = [S(28 + 4 * i, 4) for i in range(10)]
sR, sJ, sU, sC, sW, sSG, sFAST, sKV = ["s%d" % i for i in range(68, 76)]
sHI, sPADV = S(90, 2), S(92, 2)
sONES, sSPIN = "s94", "s95"
sQ0, sQ1 = "s76", "s77"
sWROW = "s78"
sTB = "s79"
T = ["s%d" % i for i in range(4, 26)]
OOB = 0x7f000000
SPIN = 1 << 17
vLANE, vL16, vL4 = "v0", "v1", "v2"
CSK = 4
vM0, vR0 = 10, 12
RES = 240
aCS1, aCS3 = 240, 248

class Gen:
    def __init__(self, stop=None, stamps=False, fast=True):
        self.a = Asm(); self.stop = stop; self.stamps = stamps; self.fast = fast
        self.nstamp = 0; self.stamp_names = []
    def mfma(self, d, x, y, c):
        self.a("v_mfma_f32_32x32x16_bf16 %s, %s, %s, %s" % (V(d, 16), x, y, V(d, 16) if c else "0"))
    def stamp(self, name):
        if not self.stamps: return
        a = self.a; k = self.nstamp; self.nstamp += 1; self.stamp_names.append(name)
        a.wait_lds()
        a("s_memtime s[96:97]")
        a("s_waitcnt lgkmcnt(0)")
        a("v_writelane_b32 v3, s96, %d" % k)
    def checkpoint(self, name):
        self.stamp(name)
        if self.stop == name:
            self.a("s_waitcnt vmcnt(0) lgkmcnt(0)"); self.a("s_branch L_end")
    def poll(self, vaddr, soff, vt, sleep=0):
        a = self.a; L = a.label()
        a("s_mov_b32 %s, %d" % (sSPIN, SPIN))
        a.place(L)
        if sleep: a("s_sleep %d" % sleep)
        a("buffer_load_dword %s, %s, %s, %s offen sc1" % (vt, vaddr, sWS, soff))
        a("s_sub_u32 %s, %s, 1" % (sSPIN, sSPIN))
        a("s_cbranch_scc1 L_abort")
        a("s_waitcnt vmcnt(0)")
        a("v_cmp_eq_u32 vcc, 0, %s" % vt)
        a("s_cbranch_vccnz %s" % L)
    def mstore(self, lines, tag=None, cond=False):
        a = self.a
        if not self.fast:
            for l in lines: a(l + " sc1", tag=tag, cond=cond)
            return
        L1, L2 = a.label(), a.label()
        for l in lines: a.wait_regs(*[x.strip() for x in l.split(None, 1)[1].split(",")[:2]])
        a("s_cmp_eq_u32 %s, 0" % sFAST)
        a("s_cbranch_scc0 %s" % L1)
        for l in lines: a(l + " sc1", cond=True)
        a("s_branch %s" % L2)
        a.place(L1)
        for l in lines: a(l, tag=tag, cond=cond)
        a.place(L2)
    def publish(self, l, hop, vt, stat=None):
        a = self.a
        a.wait_tag("out")
        a.barrier()
        L = a.label()
        a("s_cmp_eq_u32 %s, 0" % sW)
        a("s_cbranch_scc0 %s" % L)
        a("s_lshl_b32 %s, %s, 2" % (T[0], sJ))
        a("s_add_u32 %s, %s, %s" % (T[0], T[0], sSG))
        a("s_add_u32 %s, %s, %d" % (T[0], T[0], fl_off(l, hop)))
        a("v_mov_b32 %s, 1" % V(vt))
        a("s_mov_b64 exec, 1")
        self.mstore(["buffer_store_dword %s, off, %s, %s" % (V(vt), sWS, T[0])], cond=True)
        a("s_mov_b64 exec, -1")
        a.place(L)
        if stat is not None:
            L = a.label()
            a("s_cmp_ge_u32 %s, 2" % sW)
            a("s_cbranch_scc0 %s" % L)
            a("s_and_b32 %s, %s, 1" % (T[0], sW))
            a("s_lshl_b32 %s, %s, 8" % (T[1], T[0]))
            a("s_add_u32 %s, %s, %d" % (T[1], T[1], R2 + 24576))
            a("v_add_u32 %s, %s, %s" % (V(vt), T[1], vL4))
            a("ds_read2st64_b32 %s, %s offset0:0 offset1:24" % (V(vt + 2, 2), V(vt)))
            a("ds_read2st64_b32 %s, %s offset0:48 offset1:72" % (V(vt + 4, 2), V(vt)))
            a("s_lshl_b32 %s, %s, 1" % (T[1], sU))
            a("s_add_u32 %s, %s, %s" % (T[0], T[0], T[1]))
            a("s_lshl_b32 %s, %s, 11" % (T[0], T[0]))
            a("s_lshl_b32 %s, %s, 8" % (T[1], sC))
            a("s_add_u32 %s, %s, %s" % (T[0], T[0], T[1]))
            a("s_add_u32 %s, %s, %s" % (T[0], T[0], sSG))
            a("s_add_u32 %s, %s, %d" % (T[0], T[0], st_off(l, stat)))
            a("v_add_f32 %s, %s, %s" % (V(vt + 2), V(vt + 2), V(vt + 3)))
            a("v_add_f32 %s, %s, %s" % (V(vt + 4), V(vt + 4), V(vt + 5)))
            a("v_add_f32 %s, %s, %s" % (V(vt + 2), V(vt + 2), V(vt + 4)))
            self.mstore(["buffer_store_dword %s, %s, %s, %s offen" % (V(vt + 2), vL4, sWS, T[0])], cond=True)
            a.place(L)
    def flag_addr(self, v, n, first):
        a = self.a
        a("v_min_u32 %s, %d, %s" % (v, n - 1, vLANE))
        if first not in (0, "0"): a("v_add_u32 %s, %s, %s" % (v, first, v))
        a("v_lshlrev_b32 %s, 2, %s" % (v, v))
    def tr_addr128(self, va, vb, vt, rot, base):
        a = self.a
        a("v_bfe_u32 %s, %s, 4, 1" % (va, vLANE))
        if rot: a("v_xor_b32 %s, %s, %s" % (va, sW, va))
        a("v_lshlrev_b32 %s, 5, %s" % (va, va))
        a("v_and_b32 %s, 3, %s" % (vt, vLANE))
        a("v_lshl_add_u32 %s, %s, 3, %s" % (va, vt, va))
        a("v_bfe_u32 %s, %s, 3, 1" % (vt, vLANE))
        a("v_lshlrev_b32 %s, 6, %s" % (vt, vt))
        a("v_xor_b32 %s, %s, %s" % (va, vt, va))
        a("v_bfe_u32 %s, %s, 2, 2" % (vt, vLANE))
        a("v_lshl_add_u32 %s, %s, 7, %s" % (va, vt, va))
        a("v_lshrrev_b32 %s, 5, %s" % (vt, vLANE))
        a("v_lshl_add_u32 %s, %s, 9, %s" % (va, vt, va))
        if base not in (0, "0"): a("v_add_u32 %s, %s, %s" % (va, base, va))
        a("v_xor_b32 %s, 64, %s" % (vb, va))
    def dma_src128(self, v, vt, pitch, n=4):
        a = self.a
        a("v_bfe_u32 %s, %s, 4, 1" % (vt, vLANE))
        a("v_lshlrev_b32 %s, 2, %s" % (vt, vt))
        a("v_and_b32 %s, 7, %s" % (V(v), vLANE))
        a("v_xor_b32 %s, %s, %s" % (V(v), vt, V(v)))
        a("v_lshlrev_b32 %s, 4, %s" % (V(v), V(v)))
        a("v_lshrrev_b32 %s, 3, %s" % (vt, vLANE))
        a("v_mul_u32_u24 %s, %d, %s" % (vt, pitch, vt))
        a("v_add_u32 %s, %s, %s" % (V(v), vt, V(v)))
        for k in range(1, n):
            a("v_add_u32 %s, %d, %s" % (V(v + k), k * (8 * pitch - 1024), V(v)))
    def dma_atoms(self, srd, v, pitch, src0, lds0, soff, tag, n=14):
        at = []
        for k in range(n):
            if k % 4 == 0:
                at.append(("s_add_u32 %s, %s, %d" % (soff, src0[0], src0[1] + k * 8 * pitch), None))
                at.append(("s_add_u32 m0, %s, %d" % (lds0[0], lds0[1] + k * 1024), None))
            at.append(("buffer_load_dwordx4 %s, %s, %s offen offset:%d lds" % (V(v + k % 4), srd, soff, 1024 * (k % 4)), tag))
        return at
    def put(self, atoms):
        for t, tag in atoms:
            if callable(t): t()
            else: self.a(t, tag=tag)
    def finish_stats(self, vs, vq, vmean, vvar):
        a = self.a
        a("v_mul_f32 %s, %s, %s" % (vmean, hx(f2u(1.0 / 448)), vs))
        a("v_mul_f32 %s, %s, %s" % (vq, hx(f2u(1.0 / 448)), vq))
        a("v_fma_f32 %s, -%s, %s, %s" % (vvar, vmean, vmean, vq))
        a("v_max_f32 %s, 0, %s" % (vvar, vvar))
    def mean_frag(self, bm, vmean, vt):
        a = self.a
        for k in (0, 1, 4, 5): a("v_mov_b32 %s, 0" % V(bm + k))
        a("v_cvt_pk_bf16_f32 %s, -%s, -%s" % (V(bm + 2), vmean, vmean))
        a("v_lshlrev_b32 %s, 16, %s" % (vt, V(bm + 2)))
        a("v_add_f32 %s, %s, %s" % (vt, vmean, vt))
        a("v_cvt_pk_bf16_f32 %s, -%s, 0" % (V(bm + 3), vt))
    def cs_frag(self, d0, d1, vcs, vt):
        a = self.a
        a("v_cvt_pk_bf16_f32 %s, %s, 0" % (d1, vcs))
        a("v_lshlrev_b32 %s, 16, %s" % (vt, d1))
        a("v_sub_f32 %s, %s, %s" % (vt, vcs, vt))
        a("v_cvt_pk_bf16_f32 %s, %s, %s" % (d0, vcs, vt))
    def stat_loads(self, v, soff):
        return [("buffer_load_dword %s, %s, %s, %s offen offset:%d sc1" % (V(v + c), vL4, sWS, soff, 256 * c), None) for c in range(7)]
    def stat_reduce(self, v, soff, vs, vq):
        a = self.a; L, L2 = a.label(), a.label()
        a("s_mov_b32 %s, %d" % (sSPIN, SPIN))
        a.wait_regs(V(v, 7))
        a.place(L)
        a("v_max3_u32 %s, %s, %s, %s" % (vq, V(v), V(v + 1), V(v + 2)))
        a("v_max3_u32 %s, %s, %s, %s" % (vq, vq, V(v + 3), V(v + 4)))
        a("v_max3_u32 %s, %s, %s, %s" % (vq, vq, V(v + 5), V(v + 6)))
        a("v_cmp_eq_u32 vcc, -1, %s" % vq)
        a("s_cbranch_vccz %s" % L2)
        for t, _ in self.stat_loads(v, soff): a(t, cond=True)
        a("s_sub_u32 %s, %s, 1" % (sSPIN, sSPIN))
        a("s_cbranch_scc1 L_abort")
        a.ins.append(Ins("s_waitcnt vmcnt(0)"))
        a("s_branch %s" % L)
        a.place(L2)
        a("v_add_f32 %s, %s, %s" % (vs, V(v), V(v + 1)))
        a("v_add_f32 %s, %s, %s" % (vq, V(v + 2), V(v + 3)))
        a("v_add_f32 %s, %s, %s" % (vs, vs, V(v + 4)))
        a("v_add_f32 %s, %s, %s" % (vq, vq, V(v + 5)))
        a("v_add_f32 %s, %s, %s" % (vs, vs, V(v + 6)))
        a("v_add_f32 %s, %s, %s" % (vs, vs, vq))
        a("v_mov_b32 %s, %s" % (vq, vs))
        a("v_permlane32_swap_b32 %s, %s" % (vs, vq))

    def prologue(self):
        a = self.a
        a("s_cmp_ge_u32 s2, 256")
        a("s_cbranch_scc1 L_exit")
        a("s_load_dwordx16 s[4:19], s[0:1], 0")
        a("s_load_dwordx4 s[20:23], s[0:1], 64")
        a("s_load_dwordx2 s[24:25], s[0:1], 80")
        a("v_lshrrev_b32 v1, 6, v0")
        a("v_and_b32 v0, 63, v0")
        a("v_readfirstlane_b32 %s, v1" % sW)
        a("v_lshlrev_b32 %s, 4, %s" % (vL16, vLANE))
        a("v_lshlrev_b32 %s, 2, %s" % (vL4, vLANE))
        if self.stamps: a("v_mov_b32 v3, 0")
        a("s_and_b32 s3, s2, 7")
        a("s_lshl_b32 s3, s3, 1")
        a("s_lshr_b32 %s, s2, 7" % sR)
        a("s_add_u32 %s, %s, s3" % (sR, sR))
        a("s_lshr_b32 %s, s2, 3" % sJ)
        a("s_and_b32 %s, %s, 15" % (sJ, sJ))
        a("s_cmp_ge_u32 %s, 7" % sJ)
        a("s_cselect_b32 %s, 1, 0" % sU)
        a("s_cselect_b32 s3, 7, 0")
        a("s_sub_u32 %s, %s, s3" % (sC, sJ))
        a("s_cmp_ge_u32 %s, 7" % sC)
        a("s_cselect_b32 s3, 7, 0")
        a("s_sub_u32 %s, %s, s3" % (sC, sC))
        a("s_lshl_b32 %s, %s, 21" % (sSG, sR))
        a("s_mov_b32 s90, 0\ns_mov_b32 s91, -1\ns_mov_b32 s92, 0xf0000000\ns_mov_b32 s93, 0xf0000000")
        a("s_mov_b32 %s, 0x3f803f80" % sONES)
        a("s_mov_b32 %s, 0" % sFAST)
        a("s_mul_i32 %s, %s, 14336" % (sQ0, sW))
        a("s_add_u32 %s, %s, %d" % (sQ1, sQ0, R1))
        a("s_mul_i32 %s, %s, %d" % (sWROW, sW, 112 * 896))
        a("s_lshl_b32 s3, %s, 7" % sC)
        a("s_add_u32 %s, %s, s3" % (sWROW, sWROW))
        a("s_mul_i32 %s, %s, %d" % (sTB, sU, 2 * 28 * KB))
        a("s_add_u32 %s, %s, %s" % (sTB, sTB, sSG))
        a("s_lshl_b32 %s, %s, 19" % (sKV, sJ))
        a("s_lshl_b32 s3, %s, 12" % sW)
        a("s_add_u32 %s, %s, s3" % (sKV, sKV))
        a("s_add_u32 %s, %s, %d" % (sKV, sKV, KV_OFF))
        sizes = [(28, 4, 2048 * 896), (32, 6, 448 * 2688), (36, 8, 448 * 896), (40, 12, 448 * 896), (44, 14, 448 * 896),
                 (48, 16, 448 * 3584), (52, 18, 1792 * 896), (56, 20, 2048 * 896), (60, 22, 256), (64, 24, WS_BYTES)]
        a("s_waitcnt lgkmcnt(0)")
        for d, p, n in sizes:
            a("s_mov_b32 s%d, s%d\ns_and_b32 s%d, s%d, 0xffff\ns_mov_b32 s%d, %s\ns_mov_b32 s%d, 0x20000" % (d, p, d + 1, p + 1, d + 2, hx(n), d + 3))
        self.stamp("start")

    def init_stores(self):
        a = self.a
        a("v_mov_b32 v16, -1\nv_mov_b32 v17, -1\nv_mov_b32 v18, -1\nv_mov_b32 v19, -1\nv_mov_b32 v20, 0")
        a("s_lshl_b32 %s, %s, 2" % (T[0], sJ)); a("s_add_u32 %s, %s, %s" % (T[0], T[0], sW))
        a("s_lshl_b32 %s, %s, 10" % (T[1], T[0])); a("s_add_u32 %s, %s, %s" % (T[1], T[1], sSG)); a("s_add_u32 %s, %s, %d" % (T[1], T[1], ST_OFF))
        a("buffer_store_dwordx4 v[16:19], %s, %s, %s offen sc1" % (vL16, sWS, T[1]), tag="init")
        a("s_lshl_b32 %s, %s, 6" % (T[1], sR)); a("s_add_u32 %s, %s, %s" % (T[1], T[1], T[0]))
        a("s_lshl_b32 %s, %s, 8" % (T[1], T[1])); a("s_add_u32 %s, %s, %d" % (T[1], T[1], H2_OFF))
        a("buffer_store_dword v16, %s, %s, %s offen sc1" % (vL4, sWS, T[1]), tag="init")
        a("s_lshl_b32 %s, %s, 4" % (T[1], T[0])); a("s_add_u32 %s, %s, %s" % (T[1], T[1], sR))
        a("s_lshl_b32 %s, %s, 7" % (T[1], T[1])); a("s_add_u32 %s, %s, %d" % (T[1], T[1], F1_OFF))
        a("s_lshl_b32 %s, %s, 5" % (T[2], T[0])); a("s_add_u32 %s, %s, %s" % (T[2], T[2], sSG)); a("s_add_u32 %s, %s, %d" % (T[2], T[2], FL_OFF - 32))
        a("v_lshlrev_b32 v21, 17, %s" % vLANE); a("v_add_u32 v21, %s, v21" % T[1])
        a("v_add_u32 v22, %s, %s" % (T[2], vL4))
        a("v_cmp_gt_u32 vcc, 8, %s" % vLANE)
        a("v_cndmask_b32 v21, v22, v21, vcc")
        a("s_mov_b64 exec, 0xff03")
        a("buffer_store_dword v20, v21, %s, 0 offen sc1" % sWS, tag="init")
        a("s_mov_b64 exec, -1")

    def handshake_store(self):
        a = self.a; L = a.label()
        a("s_cmp_eq_u32 %s, 0" % sW)
        a("s_cbranch_scc0 %s" % L)
        a("s_getreg_b32 %s, hwreg(HW_REG_XCC_ID, 0, 4)" % T[0])
        a("s_add_u32 %s, %s, 1" % (T[0], T[0]))
        a("v_mov_b32 v239, %s" % T[0])
        a("s_lshl_b32 %s, %s, 4" % (T[0], sR)); a("s_add_u32 %s, %s, %s" % (T[0], T[0], sJ))
        a("s_mov_b64 exec, 1")
        a("buffer_store_byte v239, off, %s, %s sc1" % (sDBG, T[0]), cond=True)
        a("s_mov_b64 exec, -1")
        a.place(L)
    def handshake_check(self, vt):
        a = self.a; L = a.label()
        a("s_mov_b32 %s, %d" % (sSPIN, SPIN))
        a("s_mov_b32 %s, 0x01010101" % T[0]); a("s_mov_b32 %s, 0x80808080" % T[1])
        a.place(L)
        a("buffer_load_dword %s, %s, %s, 0 offen sc1" % (V(vt), vL4, sDBG))
        a("s_sub_u32 %s, %s, 1" % (sSPIN, sSPIN))
        a("s_cbranch_scc1 L_abort")
        a("s_waitcnt vmcnt(0)")
        a("v_subrev_u32 %s, %s, %s" % (V(vt + 1), T[0], V(vt)))
        a("v_and_b32 %s, %s, %s" % (V(vt + 1), T[1], V(vt + 1)))
        a("v_cmp_ne_u32 vcc, 0, %s" % V(vt + 1))
        a("s_cbranch_vccnz %s" % L)
        if self.fast:
            a("s_getreg_b32 %s, hwreg(HW_REG_XCC_ID, 0, 4)" % T[1])
            a("s_add_u32 %s, %s, 1" % (T[1], T[1]))
            a("s_mul_i32 %s, %s, %s" % (T[1], T[1], T[0]))
            a("v_cmp_eq_u32 vcc, %s, %s" % (T[1], V(vt)))
            a("s_lshl_b32 %s, %s, 2" % (T[0], sR))
            a("s_lshr_b64 %s, vcc, %s" % (S(6, 2), T[0]))
            a("s_and_b32 s6, s6, 15")
            a("s_cmp_eq_u32 s6, 15")
            a("s_cselect_b32 %s, 1, 0" % sFAST)

    XF, AK, AV, AQ, WR, KVB, BM = 16, 128, 144, 160, 176, 208, 224
    WKL, WVL, WQL = 0, 28672, 57344
    def wq_src(self, v, vt):
        a = self.a
        a("v_lshrrev_b32 %s, 2, %s" % (vt, vLANE)); a("v_mul_u32_u24 %s, 2688, %s" % (vt, vt))
        a("v_and_b32 %s, 3, %s" % (v, vLANE)); a("v_lshl_add_u32 %s, %s, 4, %s" % (v, v, vt))
        a("s_mul_i32 %s, %s, 56" % (T[0], sJ)); a("s_and_b32 %s, %s, 0xfffffff0" % (T[0], T[0]))
        a("s_mul_i32 %s, %s, %d" % (T[1], sW, 16 * 2688)); a("s_add_u32 %s, %s, %s" % (T[0], T[0], T[1]))
        a("v_add_u32 %s, %s, %s" % (v, T[0], v))
    def wq_dma(self, v, mat, b, sM, tag):
        lds = {0: self.WQL, 1: self.WKL, 2: self.WVL}[mat]
        return [("s_mov_b32 %s, %d" % (T[2], mat * 896 + b * 64 * 2688), None),
                ("s_add_u32 m0, %s, %d" % (sM, lds + b * 4096), None),
                ("buffer_load_dwordx4 %s, %s, %s offen lds" % (v, sWQ, T[2]), tag)]
    def tr_addr64(self, v, vt, natural):
        a = self.a
        a("v_bfe_u32 %s, %s, 4, 1" % (v, vLANE)); a("v_lshlrev_b32 %s, 5, %s" % (v, v))
        a("v_and_b32 %s, 3, %s" % (vt, vLANE)); a("v_lshl_add_u32 %s, %s, 3, %s" % (v, vt, v))
        a("v_bfe_u32 %s, %s, 2, 2" % (vt, vLANE)); a("v_lshl_add_u32 %s, %s, 6, %s" % (v, vt, v))
        a("v_lshrrev_b32 %s, 5, %s" % (vt, vLANE)); a("v_lshl_add_u32 %s, %s, %d, %s" % (v, vt, 9 if natural else 8, v))
        a("s_and_b32 %s, %s, 1" % (T[0], sJ)); a("s_lshl_b32 %s, %s, 3" % (T[0], T[0]))
        a("v_add_u32 %s, %s, %s" % (v, T[0], v))
    def tr64(self, dst, v, off, natural):
        self.a("ds_read_b64_tr_b16 %s, %s offset:%d" % (V(dst, 2), v, off))
        self.a("ds_read_b64_tr_b16 %s, %s offset:%d" % (V(dst + 2, 2), v, off + (256 if natural else 512)))

    def s1_first(self):
        a = self.a; XF, AK, AV, AQ, WR = self.XF, self.AK, self.AV, self.AQ, self.WR
        XS = 57344
        vXS, vWS, vTR, vTO, vS, vQ = "v230", "v231", "v232", "v233", "v234", "v235"
        XR = 224; CS = 236; sM, sXM, sXO = T[10], T[11], T[12]
        slot = lambda b: XS + (b if b < 6 else 2) * 16384
        a("v_lshrrev_b32 v16, 3, %s" % vLANE); a("v_mul_u32_u24 v17, 896, v16")
        a("v_lshrrev_b32 v16, 1, v16"); a("v_and_b32 v18, 7, %s" % vLANE); a("v_xor_b32 v16, v16, v18")
        a("v_lshl_add_u32 %s, v16, 4, v17" % vXS)
        a("v_xor_b32 v229, 64, %s" % vXS)
        self.wq_src(vWS, "v16")
        a("s_lshl_b32 %s, %s, 10" % (sM, sW)); a("s_lshl_b32 %s, %s, 12" % (sXM, sW))
        a("s_lshl_b32 %s, %s, 2" % (sXO, sR)); a("s_add_u32 %s, %s, %s" % (sXO, sXO, sW)); a("s_mul_i32 %s, %s, %d" % (sXO, sXO, 32 * 896))
        def xdma(b):
            at = []
            for p in range(4):
                at.append(("s_add_u32 %s, %s, %d" % (T[2], sXO, b * 128 + p * 8 * 896), None))
                at.append(("s_add_u32 m0, %s, %d" % (sXM, slot(b) + p * 1024), None))
                at.append(("buffer_load_dwordx4 %s, %s, %s offen lds" % ("v229" if p & 1 else vXS, sX, T[2]), "x%d" % b))
            return at
        for b in range(7):
            self.put(self.wq_dma(vWS, 1, b, sM, "w%d" % b) + self.wq_dma(vWS, 2, b, sM, "w%d" % b))
            if b < 6: self.put(xdma(b))
            if b == 0: self.init_stores()
        self.tr_addr64(vTR, "v16", True)
        a("v_add_u32 %s, %s, %s" % (vTO, sM, vTR))
        a("v_and_b32 v16, 31, %s" % vLANE); a("v_lshrrev_b32 v17, 5, %s" % vLANE); a("v_bfe_u32 v18, %s, 1, 3" % vLANE)
        a("v_xor_b32 v17, v17, v18"); a("v_lshlrev_b32 v17, 4, v17"); a("v_lshl_add_u32 v17, v16, 7, v17")
        a("v_add_u32 v17, %s, v17" % sXM); a("v_add_u32 %s, %d, v17" % (V(XR), XS))
        for s in range(1, 4): a("v_xor_b32 %s, %d, %s" % (V(XR + s), 32 * s, V(XR)))
        for r_ in (vS, vQ, V(CS), V(CS + 1), V(CS + 2)): a("v_mov_b32 %s, 0" % r_)
        for b in range(7):
            a.wait_tag("w%d" % b)
            self.tr64(AQ, vTO, self.WKL + b * 4096, True); self.tr64(AQ + 4, vTO, self.WVL + b * 4096, True)
            a.wait_tag("x%d" % b)
            so = slot(b) - XS
            for s in range(4):
                if so + 0 < 65536: a("ds_read_b128 %s, %s offset:%d" % (V(XF + 16 * b + 4 * s, 4), V(XR + s), so))
                else:
                    a("v_add_u32 v239, %d, %s" % (65536, V(XR + s)))
                    a("ds_read_b128 %s, v239 offset:%d" % (V(XF + 16 * b + 4 * s, 4), so - 65536))
            for k in range(4):
                a("v_dot2c_f32_bf16 %s, %s, %s" % (V(CS), sONES, V(AQ + k)))
                a("v_dot2c_f32_bf16 %s, %s, %s" % (V(CS + 1), sONES, V(AQ + 4 + k)))
            if b == 1: a.wait_tag("init")
            if b == 6:
                a("s_lshl_b32 %s, %s, 2" % (T[0], sW)); a("s_add_u32 %s, %s, %d" % (T[0], T[0], 155648))
                a("v_add_u32 v239, %s, %s" % (T[0], vL16))
                a("ds_write_b32 v239, %s" % V(CS)); a("ds_write_b32 v239, %s offset:1024" % V(CS + 1))
            a.barrier()
            if b == 1: self.handshake_store()
            if b == 2:
                self.put(xdma(6))
                for bb in range(7): self.put(self.wq_dma(vWS, 0, bb, sM, "wq"))
            for s in range(4):
                self.tr64(WR + 8 * s, vTR, self.WKL + (4 * b + s) * 1024, True)
                self.tr64(WR + 8 * s + 4, vTR, self.WVL + (4 * b + s) * 1024, True)
            for k in range(16):
                a("v_dot2c_f32_bf16 %s, %s, %s" % (vS, sONES, V(XF + 16 * b + k)))
                a("v_dot2c_f32_bf16 %s, %s, %s" % (vQ, V(XF + 16 * b + k), V(XF + 16 * b + k)))
            for s in range(4):
                x = V(XF + 16 * b + 4 * s, 4); c = not (b == 0 and s == 0)
                self.mfma(AK, V(WR + 8 * s, 4), x, c)
                self.mfma(AV, x, V(WR + 8 * s + 4, 4), c)
        a("v_add_u32 v239, %d, %s" % (155648, vL16))
        a("ds_read_b128 %s, v239" % V(AQ, 4)); a("ds_read_b128 %s, v239 offset:1024" % V(AQ + 4, 4))
        a("v_mov_b32 v230, %s" % vS); a("v_mov_b32 v231, %s" % vQ)
        a("v_permlane32_swap_b32 v230, %s" % vS); a("v_permlane32_swap_b32 v231, %s" % vQ)
        a("v_add_f32 %s, v230, %s" % (vS, vS)); a("v_add_f32 %s, v231, %s" % (vQ, vQ))
        for m in range(2):
            b0 = AQ + 4 * m
            a("v_add_f32 %s, %s, %s" % (V(b0), V(b0), V(b0 + 1))); a("v_add_f32 %s, %s, %s" % (V(b0 + 2), V(b0 + 2), V(b0 + 3)))
            a("v_add_f32 %s, %s, %s" % (V(b0), V(b0), V(b0 + 2)))
            self.cs_frag(V(CSK + 2 * m), V(CSK + 2 * m + 1), V(b0), V(b0 + 1))
        def before_q():
            a.wait_tag("wq")
            a("v_add_u32 v230, %d, %s" % (self.WQL, vTO))
            for b in range(7): self.tr64(WR + 4 * b, "v230", b * 4096, True)
            for k in range(28): a("v_dot2c_f32_bf16 %s, %s, %s" % (V(CS + 2), sONES, V(WR + k)))
            a("s_lshl_b32 %s, %s, 2" % (T[0], sW)); a("s_add_u32 %s, %s, %d" % (T[0], T[0], 155648 + 2048))
            a("v_add_u32 v239, %s, %s" % (T[0], vL16))
            a("ds_write_b32 v239, %s" % V(CS + 2))
            a.barrier()
            a("v_add_u32 v239, %d, %s" % (155648 + 2048, vL16))
            a("ds_read_b128 %s, v239" % V(AK, 4))
            a("v_add_f32 %s, %s, %s" % (V(AK), V(AK), V(AK + 1))); a("v_add_f32 %s, %s, %s" % (V(AK + 2), V(AK + 2), V(AK + 3)))
            a("v_add_f32 %s, %s, %s" % (V(AK), V(AK), V(AK + 2)))
            self.cs_frag(V(CSK + 4), V(CSK + 5), V(AK), V(AK + 1))
        self.s1_tail(0, vS, vQ, vTR, True, before_q)

    def s1_second(self):
        a = self.a; XF, AK, AV, AQ, WR = self.XF, self.AK, self.AV, self.AQ, self.WR
        vTR, vS, vQ = "v232", "v234", "v235"
        self.tr_addr64(vTR, "v16", False)
        a("s_lshr_b32 %s, %s, 1" % (T[0], sW)); a("s_mul_i32 %s, %s, 7" % (T[0], T[0]))
        self.flag_addr("v16", 7, T[0])
        a("s_add_u32 %s, %s, %d" % (T[1], sSG, fl_off(0, 7)))
        a("s_mul_i32 %s, %s, %d" % (T[3], sW, 28 * KB)); a("s_add_u32 %s, %s, %s" % (T[3], T[3], sSG)); a("s_add_u32 %s, %s, %d" % (T[3], T[3], X_OFF))
        a("s_lshl_b32 %s, %s, 11" % (T[4], sW)); a("s_add_u32 %s, %s, %s" % (T[4], T[4], sSG)); a("s_add_u32 %s, %s, %d" % (T[4], T[4], st_off(0, 2)))
        D = 3
        def rd(ks):
            self.tr64(WR + 8 * (ks % 4), vTR, self.WKL + ks * 1024, False); self.tr64(WR + 8 * (ks % 4) + 4, vTR, self.WVL + ks * 1024, False)
        for ks in range(D): rd(ks)
        self.poll("v16", T[1], "v17")
        self.stamp("h7")
        for ks in range(28):
            if ks and ks % 4 == 0: a("s_add_u32 %s, %s, 4096" % (T[3], T[3]))
            a("buffer_load_dwordx4 %s, %s, %s, %s offen offset:%d sc1" % (V(XF + 4 * ks, 4), vL16, sWS, T[3], 1024 * (ks % 4)))
        self.put(self.stat_loads(AQ, T[4]))
        for ks in range(28):
            x = V(XF + 4 * ks, 4); w = WR + 8 * (ks % 4)
            self.mfma(AK, V(w, 4), x, ks > 0)
            if ks + D < 28: rd(ks + D)
            self.mfma(AV, x, V(w + 4, 4), ks > 0)
        self.stat_reduce(AQ, T[4], vS, vQ)
        self.s1_tail(1, vS, vQ, vTR, False, lambda: None)

    def s1_tail(self, l, vS, vQ, vTR, natural, before_q):
        a = self.a; XF, AK, AV, AQ, WR, KVB, BM = self.XF, self.AK, self.AV, self.AQ, self.WR, self.KVB, self.BM
        vMean, vRS = "v230", 236
        self.finish_stats(vS, vQ, vMean, vS)
        a("v_add_f32 %s, %s, %s" % (vS, hx(f2u(1e-5)), vS))
        keep = None
        a("v_rsq_f32 %s, %s" % ("v234", vS))
        vRr = "v234"
        self.mean_frag(BM, vMean, "v231")
        a("s_lshl_b32 %s, %s, 8" % (T[0], sW)); a("s_add_u32 %s, %s, %d" % (T[0], T[0], R2))
        a("v_add_u32 v231, %s, %s" % (T[0], vL4))
        a("ds_write_b32 v231, %s" % vRr)
        self.mfma(AK, V(CSK, 4), V(BM + 2, 4), True)
        self.mfma(AV, V(BM, 4), V(CSK, 4), True)
        a("v_lshrrev_b32 v231, 5, %s" % vLANE); a("v_lshlrev_b32 v231, 4, v231"); a("v_add_u32 v231, %s, v231" % T[0])
        a.wait_lds()
        for g in range(4): a("ds_read_b128 %s, v231 offset:%d" % (V(AQ + 4 * g, 4), 32 * g))
        a("v_mov_b32 v230, 0"); a("v_and_b32 v231, 31, %s" % vLANE); a("v_cmp_eq_u32 vcc, 28, v231")
        a("v_mov_b32 v231, %s" % sONES); a("v_cndmask_b32 v231, v230, v231, vcc")
        a("s_lshl_b32 %s, %s, 14" % (T[1], sR)); a("s_add_u32 %s, %s, %s" % (T[1], T[1], sKV))
        if l: a("s_add_u32 %s, %s, %d" % (T[1], T[1], 256 * KB))
        pkmul1 = lambda d, s: a("v_pk_mul_f32 %s, %s, %s op_sel_hi:[1,0]" % (V(d, 2), V(d, 2), s))
        for k in range(8): pkmul1(AK + 2 * k, "v[234:235]")
        for k in range(8): a("v_cvt_pk_bf16_f32 %s, %s, %s" % (V(KVB + k), V(AK + 2 * k), V(AK + 2 * k + 1)))
        for k in (6, 7): a("v_cndmask_b32 %s, %s, v230, %s" % (V(KVB + k), V(KVB + k), sHI))
        for f in range(2): a("buffer_store_dwordx4 %s, %s, %s, %s offen offset:%d sc1" % (V(KVB + 4 * f, 4), vL16, sWS, T[1], 1024 * f), tag="kv")
        for k in range(8): a("v_pk_mul_f32 %s, %s, %s" % (V(AV + 2 * k, 2), V(AV + 2 * k, 2), V(AQ + 2 * k, 2)))
        for k in range(8): a("v_cvt_pk_bf16_f32 %s, %s, %s" % (V(KVB + 8 + k), V(AV + 2 * k), V(AV + 2 * k + 1)))
        for k in range(8): a("v_cndmask_b32 %s, %s, v231, %s" % (V(KVB + 8 + k), V(KVB + 8 + k), sPADV))
        for f in range(2, 4): a("buffer_store_dwordx4 %s, %s, %s, %s offen offset:%d sc1" % (V(KVB + 4 * f, 4), vL16, sWS, T[1], 1024 * f), tag="kv")
        self.stamp("kv%d" % l)
        before_q()
        a("v_add_u32 v233, %d, %s" % (self.WQL, vTR))
        D = 6
        rd = lambda ks: self.tr64(WR + 4 * (ks % 8), "v233", ks * 1024, natural)
        for ks in range(D): rd(ks)
        a("s_lshl_b32 %s, %s, 2" % (T[0], sJ)); a("s_add_u32 %s, %s, %s" % (T[0], T[0], sW)); a("s_lshl_b32 %s, %s, 11" % (T[5], T[0]))
        a("s_add_u32 %s, %s, %d" % (T[5], T[5], F1_OFF + l * 128 * KB))
        a("s_lshl_b32 %s, %s, 7" % (T[0], sR)); a("s_add_u32 %s, %s, %s" % (T[0], T[0], T[5]))
        a("v_mov_b32 v230, 1")
        for ks in range(28):
            self.mfma(AQ, V(WR + 4 * (ks % 8), 4), V(XF + 4 * ks, 4), ks > 0)
            if ks + D < 28: rd(ks + D)
        self.mfma(AQ, V(CSK + 2, 4), V(BM, 4), True)
        a.wait_tag("kv")
        a("s_mov_b64 exec, 1")
        a("buffer_store_dword v230, off, %s, %s sc1" % (sWS, T[0]))
        a("s_mov_b64 exec, -1")
        a("v_mul_f32 v234, %s, v234" % hx(f2u(28 ** -0.5 * math.log2(math.e))))
        a("v_mov_b32 v230, 0")
        a("s_lshl_b32 %s, %s, 11" % (T[0], sW)); a("s_add_u32 %s, %s, %d" % (T[0], T[0], R2 + 8192))
        a("v_add_u32 v231, %s, %s" % (T[0], vL16))
        for k in range(8): pkmul1(AQ + 2 * k, "v[234:235]")
        for k in range(8): a("v_cvt_pk_bf16_f32 %s, %s, %s" % (V(40 + k), V(AQ + 2 * k), V(AQ + 2 * k + 1)))
        for k in (6, 7): a("v_cndmask_b32 %s, %s, v230, %s" % (V(40 + k), V(40 + k), sHI))
        a("ds_write_b128 v231, v[40:43]"); a("ds_write_b128 v231, v[44:47] offset:1024")
        a.barrier()
        for q in range(3):
            a("v_xor_b32 v230, %d, v231" % ((q + 1) * 2048))
            a("ds_read_b128 %s, v230" % V(16 + 8 * q, 4)); a("ds_read_b128 %s, v230 offset:1024" % V(20 + 8 * q, 4))
        self.checkpoint("s1_%d" % l)

    def attention(self, l):
        a = self.a
        Q, O, SS, P = 16, 48, 112, 144
        KB_ = [208, 176, 192, 160]; NB = 4
        DS, vTa, vTb = 224, "v228", "v229"
        sK, sKn, sD = T[6], T[7], T[8]
        side = []
        self.dma_src128(DS, "v230", 896)
        if l == 0:
            self.tr_addr128(vTa, vTb, "v230", True, sQ0)
            a("s_mul_i32 %s, %s, %d" % (T[9], sW, 224 * 896)); a("s_lshl_b32 %s, %s, 7" % (T[0], sC)); a("s_add_u32 %s, %s, %s" % (T[9], T[9], T[0]))
            def w4dma(ch): return self.dma_atoms(sW4, DS, 896, (T[9], ((ch >> 1) * 896 + (ch & 1) * 112) * 896), (sQ1 if ch & 1 else sQ0, 0), sD, "w4_%d" % ch)
            def pull(ch):
                at = [((lambda ch=ch: a.wait_tag("w4_%d" % ch)), None)]
                if ch & 1: at += [("v_add_u32 v230, %d, %s" % (R1, vTa), None), ("v_add_u32 v231, %d, %s" % (R1, vTb), None)]
                for i in range(7):
                    for f in range(2):
                        ad = ("v230", "v231")[f] if ch & 1 else (vTa, vTb)[f]
                        d = ((7 * ch + i) * 2 + f) * 4
                        at.append(("ds_read_b64_tr_b16 %s, %s offset:%d" % (A(d, 2), ad, 2048 * i), None))
                        at.append(("ds_read_b64_tr_b16 %s, %s offset:%d" % (A(d + 2, 2), ad, 2048 * i + 1024), None))
                at.append(((lambda: a.wait_lds()), None))
                return at
            side += w4dma(0) + w4dma(1) + pull(0) + w4dma(2) + pull(1) + w4dma(3) + pull(2)
            side += self.dma_atoms(sWO, DS, 896, (sWROW, 0), (sQ0, 0), sD, "wo") + pull(3)
            side += self.dma_atoms(sW1, DS, 896, (sWROW, 0), (sQ1, 0), sD, "w1")
            a("v_and_b32 v232, 31, %s" % vLANE); a("v_mul_u32_u24 v232, 896, v232")
            a("v_lshrrev_b32 v233, 5, %s" % vLANE); a("v_lshl_add_u32 v232, v233, 4, v232")
            a("s_lshl_b32 %s, %s, 1" % (T[0], sR)); a("s_add_u32 %s, %s, %s" % (T[0], T[0], sU)); a("s_mul_i32 %s, %s, %d" % (T[0], T[0], 64 * 896))
            a("s_lshl_b32 %s, %s, 7" % (T[1], sC)); a("s_add_u32 %s, %s, %s" % (T[0], T[0], T[1]))
            a("s_lshl_b32 %s, %s, 5" % (T[1], sW)); a("s_add_u32 %s, %s, %s" % (T[13], T[0], T[1]))
            a("s_add_u32 %s, %s, %d" % (T[14], T[13], 32 * 896))
            side = [("buffer_load_dwordx4 %s, v232, %s, %s offen" % (V(RES + 4, 4), sX, T[13]), None),
                    ("buffer_load_dwordx4 %s, v232, %s, %s offen" % (V(RES + 12, 4), sX, T[14]), None)] + side
        else:
            side += self.dma_atoms(sWO, DS, 896, (sWROW, 0), (sQ0, 0), sD, "wo") + self.dma_atoms(sW1, DS, 896, (sWROW, 0), (sQ1, 0), sD, "w1")
        for q in range(3):
            a("s_xor_b32 %s, %s, %d" % (T[0], sW, q + 1)); a("s_mul_i32 %s, %s, 12288" % (T[0], T[0])); a("s_add_u32 %s, %s, %d" % (T[0], T[0], R2 + q * 4096))
            a("v_add_u32 %s, %s, %s" % (V(234 + q), T[0], vL16))
        a("v_min_u32 v237, 15, %s" % vLANE); a("v_lshlrev_b32 v237, 7, v237")
        if l: a("s_add_u32 %s, %s, %d" % (sK, sKV, 256 * KB))
        else: a("s_mov_b32 %s, %s" % (sK, sKV))
        def kv_off(kt):
            if kt == 1: return ["s_xor_b32 %s, %s, 1" % (sKn, sR), "s_lshl_b32 %s, %s, 14" % (sKn, sKn), "s_add_u32 %s, %s, %s" % (sKn, sKn, sK)]
            return ["s_add_u32 %s, %s, %d" % (sKn, T[15], kt << 14), "s_and_b32 %s, %s, %d" % (sKn, sKn, 15 << 14), "s_add_u32 %s, %s, %s" % (sKn, sKn, sK)]
        a("s_and_b32 %s, %s, 14" % (T[15], sR)); a("s_lshl_b32 %s, %s, 14" % (T[15], T[15]))
        def kv_load(kt, f): return "buffer_load_dwordx4 %s, %s, %s, %s offen offset:%d sc1" % (V(KB_[kt % NB] + 4 * f, 4), vL16, sWS, sKn, 1024 * f)
        def qk(n, half):
            kt, q = divmod(n, 4)
            self.mfma(SS + 16 * (n & 1), V(KB_[kt % NB] + 4 * half, 4), V(Q + 8 * q + 4 * half, 4), half == 1)
        def pv(n, half):
            kt, q = divmod(n, 4)
            self.mfma(O + 16 * q, V(KB_[kt % NB] + 8 + 4 * half, 4), V(P + 8 * (n & 1) + 4 * half, 4), not (kt == 0 and half == 0))
        def ex(n, i0):
            s = SS + 16 * (n & 1)
            for i in range(i0, i0 + 4): a("v_exp_f32 %s, %s" % (V(s + i), V(s + i)))
        def cv(n, i0):
            s = SS + 16 * (n & 1)
            for i in range(i0, i0 + 2): a("v_cvt_pk_bf16_f32 %s, %s, %s" % (V(P + 8 * (n & 1) + i), V(s + 2 * i), V(s + 2 * i + 1)))
        def owr(q):
            return [("ds_write_b128 %s, %s offset:%d" % (V(234 + q), V(O + 16 * q + 4 * g, 4), 1024 * g), None) for g in range(4)]
        nslots = 64
        first_side, last_side = 4, 58
        per = len(side) / float(4 * (last_side - first_side)); done = [0]
        def feed(n, k):
            if n < first_side: return
            want = min(len(side), int(math.ceil(per * (4 * (n - first_side) + k + 1))))
            self.put(side[done[0]:want]); done[0] = max(done[0], want)
        qk(0, 0); qk(0, 1)
        for n in range(nslots):
            kt, q = divmod(n, 4)
            free = [[], [], [], []]
            if n == 3:
                if l == 0: self.handshake_check(230)
                self.poll("v237", T[5], "v230")
                self.stamp("h1_%d" % l)
                for k2 in (1, 2, 3):
                    for t in kv_off(k2): a(t)
                    for f in range(4): a(kv_load(k2, f))
                a.barrier()
            if q == 2 and kt + NB < 16:
                o = kv_off(kt + NB); free[1].append(o[0]); free[2].append(o[1]); free[3].append(o[2])
            if n == 3 and kt + NB < 16:
                for t in kv_off(NB): a(t)
            if q == 3 and kt + NB < 16: free[0].append(kv_load(kt + NB, 0)); free[2].append(kv_load(kt + NB, 1))
            if q == 1 and kt >= 1 and kt - 1 + NB < 16: free[0].append(kv_load(kt - 1 + NB, 2)); free[2].append(kv_load(kt - 1 + NB, 3))
            if n == 2: free = [[], [], [], []]
            def fr(k):
                for t in free[k]: a(t)
                feed(n, k)
                if k == 3 and q == 2 and kt < 15 and n != 2: a.wait_regs(V(KB_[(kt + 1) % NB], 8))
                if k == 1 and q == 1 and kt >= 1: a.wait_regs(V(KB_[kt % NB] + 8, 8))
                if n >= 62 and k >= 2: self.put(owr(n - 62)[2 * (k - 2):2 * (k - 2) + 2])
            if n + 1 < nslots: qk(n + 1, 0)
            fr(0); ex(n, 0)
            if n + 1 < nslots: qk(n + 1, 1)
            fr(1); cv(n, 0); ex(n, 4)
            if n: pv(n - 1, 0)
            fr(2); cv(n, 2); ex(n, 8)
            if n: pv(n - 1, 1)
            fr(3); cv(n, 4); ex(n, 12); cv(n, 6)
        assert done[0] == len(side)
        pv(63, 0); pv(63, 1)
        self.put(owr(2))
        a("s_mul_i32 %s, %s, 12288" % (T[0], sW)); a("s_add_u32 %s, %s, %d" % (T[0], T[0], R2)); a("v_add_u32 v230, %s, %s" % (T[0], vL16))
        a.barrier()
        self.stamp("att%d" % l)
        for g in range(12): a("ds_read_b128 %s, v230 offset:%d" % (V(SS + 4 * g, 4), 1024 * g))
        OW = O + 48
        for q in range(3):
            for k in range(8): a("v_pk_add_f32 %s, %s, %s" % (V(OW + 2 * k, 2), V(OW + 2 * k, 2), V(SS + 16 * q + 2 * k, 2)))
        Lok = a.label()
        a("v_mov_b32 v230, %s" % V(OW + 12)); a("v_mov_b32 v232, %s" % V(OW + 12))
        a("v_permlane32_swap_b32 v230, v232")
        a("v_subrev_u32 v230, %s, v232" % hx(f2u(2.0 ** -60)))
        a("v_cmp_lt_u32 vcc, %s, v230" % hx(f2u(2.0 ** 60) - f2u(2.0 ** -60)))
        a("s_cbranch_vccz %s" % Lok)
        self.attention_exact(l, sK)
        a.place(Lok)
        a("v_rcp_f32 v232, v232"); a("v_mov_b32 v230, 0")
        a("s_lshl_b32 %s, %s, 15" % (T[0], sW)); a("s_lshl_b32 %s, %s, 11" % (T[1], sJ)); a("s_add_u32 %s, %s, %s" % (T[0], T[0], T[1]))
        a("s_add_u32 %s, %s, %s" % (T[0], T[0], sSG))
        if O_OFF[l]: a("s_add_u32 %s, %s, %d" % (T[0], T[0], O_OFF[l]))
        for k in range(8): a("v_pk_mul_f32 %s, %s, v[232:233] op_sel_hi:[1,0]" % (V(OW + 2 * k, 2), V(OW + 2 * k, 2)))
        for k in range(8): a("v_cvt_pk_bf16_f32 %s, %s, %s" % (V(SS + k), V(OW + 2 * k), V(OW + 2 * k + 1)))
        for k in (6, 7): a("v_cndmask_b32 %s, %s, v230, %s" % (V(SS + k), V(SS + k), sHI))
        self.mstore(["buffer_store_dwordx4 %s, %s, %s, %s offen offset:%d" % (V(SS + 4 * f, 4), vL16, sWS, T[0], 1024 * f) for f in range(2)], tag="out")
        if l == 0:
            for t in range(2):
                b = RES + 8 * t
                a("v_permlane32_swap_b32 %s, %s" % (V(b + 4), V(b + 6))); a("v_permlane32_swap_b32 %s, %s" % (V(b + 5), V(b + 7)))
                for k in range(4):
                    a("v_lshlrev_b32 %s, 16, %s" % (V(b + 2 * k) if k < 3 else "v230", V(b + 4 + k)))
                    a("v_and_b32 %s, 0xffff0000, %s" % (V(b + 2 * k + 1), V(b + 4 + k)))
                a("v_mov_b32 %s, v230" % V(b + 6))

    def attention_exact(self, l, sK):
        a = self.a
        Q, OW, SS, P, KV = 40, 96, 112, 144, 176
        vm, vmn, vt = "v230", "v231", "v233"
        L = a.label()
        a.ins.append(Ins("s_waitcnt vmcnt(0) lgkmcnt(0)"))
        save = (list(a.vm), list(a.lg)); a.vm = []; a.lg = []
        a("s_and_b32 %s, %s, %s" % (T[0], sK, hx(~0x3fff)))
        a("s_add_u32 %s, %s, %d" % (T[1], T[0], 256 * KB))
        a("v_mov_b32 %s, 0xff7fffff" % vm)
        for k in range(16): a("v_mov_b32 %s, 0" % V(OW + k))
        a.place(L)
        for f in range(4): a("buffer_load_dwordx4 %s, %s, %s, %s offen offset:%d sc1" % (V(KV + 4 * f, 4), vL16, sWS, T[0], 1024 * f))
        self.mfma(SS, V(KV, 4), V(Q, 4), False); self.mfma(SS, V(KV + 4, 4), V(Q + 4, 4), True)
        a("v_max3_f32 %s, %s, %s, %s" % (vmn, vm, V(SS), V(SS + 1)))
        for k in range(2, 16, 2): a("v_max3_f32 %s, %s, %s, %s" % (vmn, vmn, V(SS + k), V(SS + k + 1)))
        a("v_mov_b32 %s, %s" % (vt, vmn)); a("v_permlane32_swap_b32 %s, %s" % (vt, vmn)); a("v_max_f32 %s, %s, %s" % (vmn, vmn, vt))
        a("v_sub_f32 %s, %s, %s" % (vt, vm, vmn)); a("v_exp_f32 %s, %s" % (vt, vt)); a("v_mov_b32 %s, %s" % (vm, vmn))
        for k in range(16): a("v_sub_f32 %s, %s, %s" % (V(SS + k), V(SS + k), vmn))
        for k in range(16): a("v_exp_f32 %s, %s" % (V(SS + k), V(SS + k)))
        for k in range(16): a("v_mul_f32 %s, %s, %s" % (V(OW + k), V(OW + k), vt))
        for k in range(8): a("v_cvt_pk_bf16_f32 %s, %s, %s" % (V(P + k), V(SS + 2 * k), V(SS + 2 * k + 1)))
        self.mfma(OW, V(KV + 8, 4), V(P, 4), True); self.mfma(OW, V(KV + 12, 4), V(P + 4, 4), True)
        a("s_add_u32 %s, %s, 4096" % (T[0], T[0])); a("s_cmp_lt_u32 %s, %s" % (T[0], T[1]))
        a("s_nop 15")
        a("s_cbranch_scc1 %s" % L)
        a("v_mov_b32 v230, %s" % V(OW + 12)); a("v_mov_b32 v232, %s" % V(OW + 12))
        a("v_permlane32_swap_b32 v230, v232")
        a.vm, a.lg = save

    def build(self):
        a = self.a
        self.prologue()
        self.s1_first()
        for l in range(2):
            if l: self.s1_second()
            self.attention(l)
            self.after_attention(l)
        a.place("L_end")
        if self.stamps:
            a("s_lshl_b32 %s, s2, 2" % T[0]); a("s_add_u32 %s, %s, %s" % (T[0], T[0], sW)); a("s_lshl_b32 %s, %s, 8" % (T[0], T[0])); a("s_add_u32 %s, %s, %d" % (T[0], T[0], STAMP_OFF))
            a("buffer_store_dword v3, %s, %s, %s offen" % (vL4, sWS, T[0]))
        a.place("L_abort")
        a.place("L_exit")
        a("s_endpgm")
        head = open("cdna_kernels/%s.s.ref" % NAME).read().split("; Override launch")[0]
        head += "; @launch grid=(256,1,1) block=(256,1,1) lds=%d\n" % LDS_BYTES
        head += '.amdgcn_target "amdgcn-amd-amdhsa--gfx950"\n.text\n.globl %s_kernel\n.p2align 8\n.type %s_kernel,@function\n%s_kernel:\n' % (NAME, NAME, NAME)
        tail = '.section .rodata,"a"\n.p2align 6\n.amdhsa_kernel %s_kernel\n' % NAME
        tail += "  .amdhsa_next_free_vgpr 512\n  .amdhsa_next_free_sgpr 102\n  .amdhsa_accum_offset 256\n  .amdhsa_group_segment_fixed_size 0\n  .amdhsa_kernarg_size 88\n"
        tail += "  .amdhsa_user_sgpr_count 2\n  .amdhsa_user_sgpr_kernarg_segment_ptr 1\n  .amdhsa_system_sgpr_workgroup_id_x 1\n.end_amdhsa_kernel\n"
        return head + a.text() + tail

from stages import install
install(Gen)

if __name__ == "__main__":
    import argparse
    ap = argparse.ArgumentParser()
    ap.add_argument("-o", default="cdna_kernels/%s.s" % NAME)
    ap.add_argument("--stop"); ap.add_argument("--stamps", action="store_true"); ap.add_argument("--nofast", action="store_true")
    x = ap.parse_args()
    g = Gen(stop=x.stop, stamps=x.stamps, fast=not x.nofast)
    s = g.build()
    open(x.o, "w").write(s)
    if x.stamps: open(x.o + ".stamps", "w").write("\n".join(g.stamp_names))
    print("wrote", x.o, len(s), "bytes", len(g.a.ins), "lines")
```

```python
import math
from asmkit import *
from layout import *

def install(Gen):
    import __main__ as M
    G = M if hasattr(M, "sWS") else __import__("gen")
    for n in dir(G):
        if n[0] in "sv" or n in ("T", "OOB", "SPIN", "CSK", "RES", "aCS1", "aCS3", "f2u", "hx"):
            globals()[n] = getattr(G, n)
    for n, f in list(globals().items()):
        if callable(f) and n.startswith("m_"): setattr(Gen, n[2:], f)

KC = 2.0 * math.sqrt(2.0 / math.pi) * math.log2(math.e)
WF, ACT, ACC = 16, 80, 144
XW, XR_ = 222, 225
vTa, vTb = "v226", "v227"
DS = 228

def m_ksplit_addr(self):
    a = self.a
    for jp in (1, 2, 3):
        a("s_xor_b32 %s, %s, %d" % (T[0], sW, jp)); a("s_mul_i32 %s, %s, 6144" % (T[0], T[0])); a("s_add_u32 %s, %s, %d" % (T[0], T[0], R2 + (jp - 1) * 2048))
        a("v_add_u32 %s, %s, %s" % (V(XW + jp - 1), T[0], vL16))
    a("s_mul_i32 %s, %s, 6144" % (T[0], sW)); a("s_add_u32 %s, %s, %d" % (T[0], T[0], R2)); a("v_add_u32 %s, %s, %s" % (V(XR_), T[0], vL16))

def m_pull(self, tag, region, padded=False):
    a = self.a
    a.wait_tag(tag)
    pa, pb = vTa, vTb
    if region:
        pa, pb = "v232", "v233"
        a("v_add_u32 %s, %d, %s" % (pa, R1, vTa)); a("v_add_u32 %s, %d, %s" % (pb, R1, vTb))
    if padded:
        a("v_and_b32 v232, %s, %s" % (hx(~512), vTa)); a("v_and_b32 v233, %s, %s" % (hx(~512), vTb))
    for ks in range(8 if padded else 7):
        off = (28 * (ks >> 1) + 16 * (ks & 1)) * 128 if padded else ks * 2048
        for f in range(2):
            d = WF + (2 * ks + f) * 4
            a("ds_read_b64_tr_b16 %s, %s offset:%d" % (V(d, 2), (pa, pb)[f], off))
            second = ("v232", "v233")[f] if (padded and ks & 1) else (pa, pb)[f]
            a("ds_read_b64_tr_b16 %s, %s offset:%d" % (V(d + 2, 2), second, off + 1024))

def m_xchg_write(self, acc, t):
    at = []
    for jp in (1, 2, 3):
        for p in range(2):
            at.append(("ds_write_b128 %s, %s offset:%d" % (V(XW + jp - 1), V(acc + 32 * t + 8 * jp + 4 * p, 4), t * 24576 + 1024 * p), None))
    return at
def m_xchg_read(self, tmp, t):
    for g in range(6): self.a("ds_read_b128 %s, %s offset:%d" % (V(tmp + 4 * g, 4), V(XR_), t * 24576 + 1024 * g))
def m_xchg_add(self, acc, tmp, t):
    for k in range(3):
        for p in range(4): self.a("v_pk_add_f32 %s, %s, %s" % (V(acc + 32 * t + 2 * p, 2), V(acc + 32 * t + 2 * p, 2), V(tmp + 8 * k + 2 * p, 2)))

def m_ksplit_tail(self, acc, tmp0, tmp1, epi):
    a = self.a
    self.dstamp("mfma1")
    a.barrier()
    self.dstamp("bar1")
    self.xchg_read(tmp0, 0)
    self.put(self.xchg_write(acc, 1))
    self.xchg_add(acc, tmp0, 0)
    epi(0, acc, tmp0)
    self.dstamp("epi0")
    a.barrier()
    self.dstamp("bar2")
    self.xchg_read(tmp1, 1)
    self.xchg_add(acc, tmp1, 1)
    epi(1, acc + 32, tmp1)
    self.dstamp("epi1")

def m_ksplit(self, nks, vad, soff, extra, epi, check=False):
    a = self.a
    def load(t, i, cond=False):
        if i == 4: a("s_add_u32 %s, %s, 4096" % (T[19], soff[t]))
        a("buffer_load_dwordx4 %s, %s, %s, %s offen offset:%d sc1" % (V(ACT + 32 * t + 4 * i, 4), vad[t], sWS, soff[t] if i < 4 else T[19], 1024 * (i % 4)), cond=cond)
    for t in range(2):
        for i in range(nks): load(t, i)
    self.dstamp("issued")
    done = [0]; per = len(extra) / float(2 * nks)
    if check: a("s_mov_b32 %s, %d" % (sSPIN, SPIN))
    for t in range(2):
        wr = self.xchg_write(ACC, 0) if t == 1 else []
        if t == 1: self.dstamp("mfma0")
        Lr = a.label()
        if check:
            Lok = a.label()
            a.wait_regs(V(ACT + 32 * t, 4 * nks))
            a.place(Lr)
            b = ACT + 32 * t
            a("v_max3_u32 v238, %s, %s, %s" % (V(b), V(b + 1), V(b + 2)))
            a("v_max_u32 v238, v238, %s" % V(b + 3))
            for k in range(4, 4 * nks, 2): a("v_max3_u32 v238, v238, %s, %s" % (V(b + k), V(b + k + 1)))
            a("v_cmp_eq_u32 vcc, -1, v238")
            a("s_cbranch_vccz %s" % Lok)
            for i in range(nks): load(t, i, True)
            a("s_sub_u32 %s, %s, 1" % (sSPIN, sSPIN)); a("s_cbranch_scc1 L_abort")
            a.ins.append(Ins("s_waitcnt vmcnt(0)"))
            a("s_branch %s" % Lr)
            a.place(Lok)
        for i in range(nks):
            for f in range(2):
                self.mfma(ACC + 32 * t + 16 * f, V(WF + (2 * i + f) * 4, 4), V(ACT + 32 * t + 4 * i, 4), i > 0)
                if f == 0:
                    want = int(math.ceil(per * (t * nks + i + 1))); self.put(extra[done[0]:want]); done[0] = max(done[0], want)
                if t == 1 and 2 * i + f >= 5 and wr: self.put([wr.pop(0)])
        assert not wr
    self.ksplit_tail(ACC, ACT, ACT + 32, epi)

def m_row_stats(self, x, vd, tmp):
    a = self.a
    a("v_pk_add_f32 %s, %s, %s" % (V(tmp, 2), V(x, 2), V(x + 2, 2)))
    a("v_pk_mul_f32 %s, %s, %s" % (V(tmp + 2, 2), V(x, 2), V(x, 2)))
    a("v_pk_add_f32 %s, %s, %s" % (V(tmp, 2), V(tmp, 2), V(x + 4, 2)))
    a("v_pk_fma_f32 %s, %s, %s, %s" % (V(tmp + 2, 2), V(x + 2, 2), V(x + 2, 2), V(tmp + 2, 2)))
    a("v_pk_add_f32 %s, %s, %s" % (V(tmp, 2), V(tmp, 2), V(x + 6, 2)))
    a("v_pk_fma_f32 %s, %s, %s, %s" % (V(tmp + 2, 2), V(x + 4, 2), V(x + 4, 2), V(tmp + 2, 2)))
    a("v_add_f32 %s, %s, %s" % (V(tmp), V(tmp), V(tmp + 1)))
    a("v_pk_fma_f32 %s, %s, %s, %s" % (V(tmp + 2, 2), V(x + 6, 2), V(x + 6, 2), V(tmp + 2, 2)))
    a("v_add_f32 %s, %s, %s" % (V(tmp + 2), V(tmp + 2), V(tmp + 3)))
    a("v_permlane32_swap_b32 %s, %s" % (V(tmp), V(tmp + 2)))
    a("v_add_f32 %s, %s, %s" % (vd, V(tmp), V(tmp + 2)))
def m_stats_out(self):
    a = self.a
    a("s_mul_i32 %s, %s, 6144" % (T[0], sW)); a("s_add_u32 %s, %s, %d" % (T[0], T[0], R2 + 24576)); a("v_add_u32 v238, %s, %s" % (T[0], vL4))
    a("ds_write2st64_b32 v238, v236, v237 offset0:0 offset1:1")
def m_own_frag_off(self, dst, base):
    a = self.a
    a("s_lshl_b32 %s, %s, 2" % (dst[0], sC)); a("s_add_u32 %s, %s, %s" % (dst[0], dst[0], sW)); a("s_lshl_b32 %s, %s, 10" % (dst[0], dst[0]))
    a("s_add_u32 %s, %s, %s" % (dst[0], dst[0], sTB)); a("s_add_u32 %s, %s, %d" % (dst[0], dst[0], base))
    a("s_add_u32 %s, %s, %d" % (dst[1], dst[0], 28 * KB))
def m_quarter_off(self, dst, base):
    a = self.a
    a("s_mul_i32 %s, %s, %d" % (dst[0], sW, 7 * KB)); a("s_add_u32 %s, %s, %s" % (dst[0], dst[0], sTB)); a("s_add_u32 %s, %s, %d" % (dst[0], dst[0], base))
    a("s_add_u32 %s, %s, %d" % (dst[1], dst[0], 28 * KB))
def m_pack_store(self, x, tmp, soff, vad=None):
    a = self.a
    for k in range(4): a("v_cvt_pk_bf16_f32 %s, %s, %s" % (V(tmp + k), V(x + 2 * k), V(x + 2 * k + 1)))
    self.mstore(["buffer_store_dwordx4 %s, %s, %s, %s offen" % (V(tmp, 4), vad or vL16, sWS, soff)], tag="out")
def m_group_poll(self, l, hop, name):
    a = self.a
    a("s_mul_i32 %s, %s, 7" % (T[0], sU)); self.flag_addr("v238", 7, T[0])
    a("s_add_u32 %s, %s, %d" % (T[1], sSG, fl_off(l, hop)))
    self.poll("v238", T[1], "v239")
    self.stamp(name)

def gelu_consts(a, vr, cA, cB, cI):
    a("v_rcp_f32 %s, %s" % (V(cI), vr))
    a("v_mul_f32 %s, %s, %s" % (V(cA), hx(f2u(-KC)), vr))
    a("v_mul_f32 %s, %s, %s" % (V(cB), vr, vr))
    a("v_mul_f32 %s, %s, %s" % (V(cB), V(cB), V(cA)))
    a("v_mul_f32 %s, %s, %s" % (V(cB), hx(f2u(0.044715)), V(cB)))
def gelu_pk(a, x, n, tmp, cA, cB, cI):
    for k in range(0, n, 2): a("v_pk_mul_f32 %s, %s, %s" % (V(tmp + k, 2), V(x + k, 2), V(x + k, 2)))
    for k in range(0, n, 2): a("v_pk_fma_f32 %s, %s, %s, %s op_sel_hi:[1,0,0]" % (V(tmp + k, 2), V(tmp + k, 2), V(cB, 2), V(cA, 2)))
    for k in range(0, n, 2): a("v_pk_mul_f32 %s, %s, %s" % (V(tmp + k, 2), V(tmp + k, 2), V(x + k, 2)))
    for k in range(n): a("v_exp_f32 %s, %s" % (V(tmp + k), V(tmp + k)))
    for k in range(0, n, 2): a("v_pk_fma_f32 %s, %s, %s, %s op_sel_hi:[1,0,0]" % (V(tmp + k, 2), V(tmp + k, 2), V(cI, 2), V(cI, 2)))
    for k in range(n): a("v_rcp_f32 %s, %s" % (V(tmp + k), V(tmp + k)))
    for k in range(0, n, 2): a("v_pk_mul_f32 %s, %s, %s" % (V(x + k, 2), V(x + k, 2), V(tmp + k, 2)))

def m_cs3_part(self, region, dst, tag):
    a = self.a
    a.wait_tag(tag)
    self.tr_addr128("v232", "v233", "v234", False, sQ1 if region else sQ0)
    for ks in range(7):
        for f in range(2):
            d = ACC + (2 * ks + f) * 4
            a("ds_read_b64_tr_b16 %s, %s offset:%d" % (V(d, 2), ("v232", "v233")[f], ks * 2048))
            a("ds_read_b64_tr_b16 %s, %s offset:%d" % (V(d + 2, 2), ("v232", "v233")[f], ks * 2048 + 1024))
    a("v_mov_b32 %s, 0" % V(dst)); a("v_mov_b32 %s, 0" % V(dst + 1))
    for ks in range(7):
        for k in range(4):
            for f in range(2): a("v_dot2c_f32_bf16 %s, %s, %s" % (V(dst + f), sONES, V(ACC + (2 * ks + f) * 4 + k)))

def m_after_attention(self, l):
    a = self.a
    Lidle, Ljoin = a.label(), a.label()
    sA, sO = (T[16], T[17]), (T[20], T[21])
    self.tr_addr128(vTa, vTb, "v230", True, sQ0)
    self.pull("wo", 0, padded=True)
    self.ksplit_addr()
    self.dma_src128(DS, "v238", 896)
    self.publish(l, 2, 232)
    self.checkpoint("s2_%d" % l)
    a("s_cmp_ge_u32 %s, 14" % sJ)
    a("s_cbranch_scc1 %s" % (Lidle if l == 0 and not (self.stop or "").endswith("_0") else "L_end"))
    self.cur = "s3_%d" % l
    a("s_lshl_b32 %s, %s, 16" % (sA[0], sU)); a("s_lshl_b32 %s, %s, 13" % (T[0], sW)); a("s_add_u32 %s, %s, %s" % (sA[0], sA[0], T[0]))
    a("s_add_u32 %s, %s, %s" % (sA[0], sA[0], sSG))
    if O_OFF[l]: a("s_add_u32 %s, %s, %d" % (sA[0], sA[0], O_OFF[l]))
    a("s_add_u32 %s, %s, %d" % (sA[1], sA[0], 32 * KB))
    self.own_frag_off(sO, X2_OFF[l])
    self.flag_addr("v238", 16, 0); a("s_add_u32 %s, %s, %d" % (T[1], sSG, fl_off(l, 2)))
    a.wait_lds()
    self.poll("v238", T[1], "v239"); self.stamp("h2_%d" % l)
    def epi3(t, x, tmp):
        r = RES + 8 * t
        for p in range(4): a("v_pk_add_f32 %s, %s, %s" % (V(r + 2 * p, 2), V(r + 2 * p, 2), V(x + 2 * p, 2)))
        self.pack_store(r, tmp, sO[t])
        self.row_stats(r, V(236 + t), tmp + 4)
    self.ksplit(8, (vL16, vL16), sA, self.dma_atoms(sW2, DS, 896, (sWROW, 0), (sQ0, 0), T[18], "w2"), epi3)
    self.stats_out()
    self.pull("w1", 1)
    if l == 0:
        a("v_mov_b32 v234, 0\nv_mov_b32 v235, 0")
        for ks in range(7):
            for k in range(4):
                for f in range(2): a("v_dot2c_f32_bf16 %s, %s, %s" % (V(234 + f), sONES, V(WF + (2 * ks + f) * 4 + k)))
        a("v_permlane32_swap_b32 v234, v235"); a("v_add_f32 v234, v234, v235")
        a("s_lshl_b32 %s, %s, 6" % (T[0], sW)); a("v_xor_b32 v235, %s, %s" % (T[0], vL4))
        a("s_mul_i32 %s, %s, 6144" % (T[0], sW)); a("s_add_u32 %s, %s, %d" % (T[0], T[0], R2 + 24576 + 1024)); a("v_add_u32 v235, %s, v235" % T[0])
        a("ds_write_b32 v235, v234")
    self.dma_src128(DS, "v238", 3584)
    self.publish(l, 3, 232, stat=0)
    self.checkpoint("s3_%d" % l)
    self.cur = "s4_%d" % l
    C1 = 208
    if l == 0:
        a("v_lshrrev_b32 v238, 5, %s" % vLANE); a("v_lshlrev_b32 v238, 4, v238")
        a("s_lshl_b32 %s, %s, 6" % (T[0], sW)); a("s_add_u32 %s, %s, %d" % (T[0], T[0], R2 + 24576 + 1024)); a("v_add_u32 v238, %s, v238" % T[0])
        for s in range(4):
            for p in range(2): a("ds_read_b128 %s, v238 offset:%d" % (V(ACC + 8 * s + 4 * p, 4), 6144 * s + 32 * p))
        for p in range(4):
            a("v_pk_add_f32 %s, %s, %s" % (V(ACC + 2 * p, 2), V(ACC + 2 * p, 2), V(ACC + 8 + 2 * p, 2)))
            a("v_pk_add_f32 %s, %s, %s" % (V(ACC + 16 + 2 * p, 2), V(ACC + 16 + 2 * p, 2), V(ACC + 24 + 2 * p, 2)))
            a("v_pk_add_f32 %s, %s, %s" % (V(C1 + 2 * p, 2), V(ACC + 2 * p, 2), V(ACC + 16 + 2 * p, 2)))
        for k in range(8): a("v_accvgpr_write_b32 %s, %s" % (A(aCS1 + k), V(C1 + k)))
    else:
        for k in range(8): a("v_accvgpr_read_b32 %s, %s" % (V(C1 + k), A(aCS1 + k)))
    self.quarter_off(sA, X2_OFF[l])
    sJJ, sSH = T[2], T[3]
    a("s_lshl_b32 %s, %s, 2" % (sJJ, sC)); a("s_add_u32 %s, %s, %s" % (sJJ, sJJ, sW))
    a("s_mov_b32 %s, 1" % sSH)
    for lim, sh in ((7, -1), (14, 2), (21, -2)):
        a("s_cmp_ge_u32 %s, %d" % (sJJ, lim)); a("s_cselect_b32 %s, %d, %s" % (sSH, sh, sSH))
    a("s_lshl_b32 %s, %s, 10" % (sJJ, sJJ))
    a("s_add_u32 %s, %s, %s" % (sO[0], sJJ, sTB)); a("s_add_u32 %s, %s, %d" % (sO[0], sO[0], H_OFF[l]))
    a("s_lshl_b32 %s, %s, 1" % (T[0], sR)); a("s_add_u32 %s, %s, %s" % (T[0], T[0], sU))
    a("s_cmp_gt_i32 %s, 0" % sSH); a("s_cselect_b32 %s, 1, -1" % T[1]); a("s_add_u32 %s, %s, %s" % (T[0], T[0], T[1]))
    a("s_lshr_b32 %s, %s, 3" % (T[1], T[0])); a("s_lshl_b32 %s, %s, 15" % (T[1], T[1]))
    a("s_and_b32 %s, %s, 7" % (T[4], T[0])); a("s_lshl_b32 %s, %s, 7" % (T[4], T[4])); a("s_add_u32 %s, %s, %s" % (T[1], T[1], T[4]))
    a("s_add_u32 %s, %s, %s" % (T[1], T[1], sJJ)); a("s_add_u32 %s, %s, %d" % (T[1], T[1], H2_OFF + l * 128 * KB))
    a("s_cmp_lt_u32 %s, 32" % T[0]); a("s_cselect_b32 %s, %s, %s" % (sO[1], T[1], hx(OOB)))
    a("v_and_b32 v232, 31, %s" % vLANE); a("v_lshrrev_b32 v233, 5, %s" % vLANE); a("v_mov_b32 v238, %s" % hx(OOB))
    for t in range(2):
        a("v_add_u32 v234, %s, v232" % sSH)
        if t: a("v_add_u32 v234, 32, v234")
        a("v_lshrrev_b32 v235, 5, v234"); a("v_mul_u32_u24 v235, %d, v235" % (28 * KB))
        a("v_and_b32 v239, 31, v234"); a("v_lshl_add_u32 v239, v233, 5, v239"); a("v_lshl_add_u32 v235, v239, 4, v235")
        a("v_cmp_gt_u32 vcc, 64, v234")
        a("v_and_b32 v234, 1, v234"); a("v_lshl_add_u32 v234, v233, 1, v234"); a("v_lshlrev_b32 v234, 4, v234")
        a("v_cndmask_b32 %s, v238, v235, vcc" % V(216 + t))
        a("v_cndmask_b32 %s, v234, v238, vcc" % V(218 + t))
    SL = (72, 136)
    a("s_lshl_b32 %s, %s, 12" % (T[10], sU)); a("s_add_u32 %s, %s, %s" % (T[10], T[10], sSG)); a("s_add_u32 %s, %s, %d" % (T[10], T[10], st_off(l, 0)))
    a("s_add_u32 %s, %s, 2048" % (T[11], T[10]))
    a("s_lshl_b32 %s, %s, 7" % (T[12], sJ)); a("s_mul_i32 %s, %s, %d" % (T[0], sW, 112 * 3584)); a("s_add_u32 %s, %s, %s" % (T[12], T[12], T[0]))
    a.wait_lds()
    self.group_poll(l, 3, "h3_%d" % l)
    SL = (72, 232)
    def epi4(t, x, tmp):
        vs, vq = V(tmp + 8), V(tmp + 9)
        self.stat_reduce(SL[t], T[10 + t], vs, vq)
        m, r1 = V(vM0 + t), V(vR0 + t)
        self.finish_stats(vs, vq, m, vs)
        a("v_add_f32 %s, %s, %s" % (vq, hx(f2u(1e-5)), vs)); a("v_rsq_f32 %s, %s" % (r1, vq))
        a("v_mov_b32 %s, %s" % (V(tmp + 10), m))
        a("v_mul_f32 %s, %s, %s" % (vs, vs, r1)); a("v_mul_f32 %s, %s, %s" % (vs, vs, r1))
        a("v_add_f32 %s, %s, %s" % (vs, hx(f2u(1e-5)), vs)); a("v_rsq_f32 %s, %s" % (vs, vs))
        for p in range(4): a("v_pk_fma_f32 %s, %s, %s, %s op_sel_hi:[1,0,1] neg_lo:[0,1,0] neg_hi:[0,1,0]" % (V(x + 2 * p, 2), V(C1 + 2 * p, 2), V(tmp + 10, 2), V(x + 2 * p, 2)))
        a("v_mul_f32 %s, %s, %s" % (vs, vs, r1))
        gelu_consts(a, vs, tmp + 12, tmp + 14, tmp + 16)
        gelu_pk(a, x, 8, tmp, tmp + 12, tmp + 14, tmp + 16)
        self.pack_store(x, x + 8, sO[0], V(216 + t))
        if t == 1:
            for tt in range(2): a("buffer_store_dwordx4 %s, %s, %s, %s offen sc1" % (V(ACC + 32 * tt + 8, 4), V(218 + tt), sWS, sO[1]))
    extra = self.stat_loads(SL[0], T[10]) + self.stat_loads(SL[1], T[11]) + self.dma_atoms(sW3, DS, 3584, (T[12], 0), (sQ1, 0), T[18], "w3a")
    self.ksplit(7, (vL16, vL16), sA, extra, epi4)
    self.pull("w2", 0)
    if l == 0: self.cs3_part(1, 14, "w3a")
    self.publish(l, 4, 232)
    self.checkpoint("s4_%d" % l)
    self.cur = "s5_%d" % l
    self.quarter_off(sA, H_OFF[l]); self.own_frag_off(sO, X1_OFF[l])
    a("s_lshl_b32 %s, %s, 1" % (T[0], sR)); a("s_add_u32 %s, %s, %s" % (T[0], T[0], sU))
    a("s_lshr_b32 %s, %s, 3" % (T[1], T[0])); a("s_lshl_b32 %s, %s, 15" % (T[1], T[1]))
    a("s_and_b32 %s, %s, 7" % (T[4], T[0])); a("s_lshl_b32 %s, %s, 7" % (T[4], T[4])); a("s_add_u32 %s, %s, %s" % (T[1], T[1], T[4]))
    a("s_mul_i32 %s, %s, %d" % (T[4], sW, 7 * KB)); a("s_add_u32 %s, %s, %s" % (T[1], T[1], T[4])); a("s_add_u32 %s, %s, %d" % (T[1], T[1], H2_OFF + l * 128 * KB))
    a("s_lshr_b32 %s, %s, 1" % (T[2], sW)); a("s_add_u32 %s, %s, 1" % (T[2], T[2]))
    a("s_and_b32 %s, %s, 1" % (T[3], sW))
    a("v_and_b32 v232, 31, %s" % vLANE); a("v_lshrrev_b32 v233, 5, %s" % vLANE)
    a("v_and_b32 v234, 1, v232"); a("v_lshl_add_u32 v234, v233, 1, v234"); a("v_lshlrev_b32 v234, 4, v234")
    for t in range(2):
        a("s_sub_u32 %s, %s, %s" % (T[4], T[1], sA[t]))
        a("s_cmp_eq_u32 %s, %d" % (T[0], 31 * t)); a("s_cselect_b32 %s, %s, %s" % (T[4], hx(OOB), T[4]))
        a("v_add_u32 v235, %s, v234" % T[4])
        a("s_cmp_eq_u32 %s, %d" % (T[3], t)); a("s_cselect_b32 %s, %s, 0" % (T[4], T[2]))
        if t: a("v_sub_u32 v232, 31, v232")
        a("v_cmp_gt_u32 vcc, %s, v232" % T[4])
        a("v_cndmask_b32 %s, %s, v235, vcc" % (V(216 + t), vL16))
    a.wait_lds()
    self.group_poll(l, 4, "h4_%d" % l)
    def epi5(t, x, tmp):
        r = RES + 8 * t
        a("v_mov_b32 %s, %s" % (V(tmp + 8), V(vM0 + t))); a("v_mov_b32 %s, %s" % (V(tmp + 10), V(vR0 + t)))
        for p in range(4): a("v_pk_add_f32 %s, %s, %s op_sel_hi:[1,0] neg_lo:[0,1] neg_hi:[0,1]" % (V(tmp + 2 * p, 2), V(r + 2 * p, 2), V(tmp + 8, 2)))
        for p in range(4): a("v_pk_fma_f32 %s, %s, %s, %s op_sel_hi:[1,0,1]" % (V(x + 2 * p, 2), V(tmp + 2 * p, 2), V(tmp + 10, 2), V(x + 2 * p, 2)))
        self.pack_store(x, tmp + 12, sO[t])
        self.row_stats(x, V(236 + t), tmp)
        for p in range(4): a("v_pk_add_f32 %s, %s, %s" % (V(r + 2 * p, 2), V(r + 2 * p, 2), V(x + 2 * p, 2)))
    self.ksplit(7, ("v216", "v217"), sA, self.dma_atoms(sW3, DS, 3584, (T[12], 1792), (sQ0, 0), T[18], "w3b"), epi5, check=True)
    self.stats_out()
    if l == 0:
        self.cs3_part(0, 236, "w3b")
        a("s_mul_i32 %s, %s, 6144" % (T[0], sW)); a("s_add_u32 %s, %s, %d" % (T[0], T[0], R2 + 24576 + 1024)); a("v_add_u32 v238, %s, %s" % (T[0], vL16))
        a("v_mov_b32 v234, v14\nv_mov_b32 v235, v15")
        a("ds_write_b128 v238, v[234:237]")
    a.wait_tag("w3b")
    self.publish(l, 5, 232, stat=1)
    self.checkpoint("s5_%d" % l)
    self.cur = "s6_%d" % l
    self.s6(l)
    self.cur = "s7_%d" % l
    self.s7(l)
    self.cur = None
    if l == 0:
        a("s_branch %s" % Ljoin)
        a.place(Lidle)
        save = (a.vm, a.lg); a.vm, a.lg = [], []
        a.ins.append(Ins("s_waitcnt vmcnt(0) lgkmcnt(0)"))
        a("s_barrier")
        self.put(self.wqkv_reload())
        a("s_waitcnt vmcnt(0)")
        a("s_barrier")
        self.flag_addr("v238", 14, 0); a("s_add_u32 %s, %s, %d" % (T[1], sSG, fl_off(l, 6)))
        self.poll("v238", T[1], "v239", sleep=8)
        a.vm, a.lg = save
        a.place(Ljoin)

def m_wqkv_reload(self):
    a = self.a
    self.wq_src("v231", "v238"); a("s_lshl_b32 %s, %s, 10" % (T[10], sW))
    at = []
    for mat in (1, 2, 0):
        for b in range(7): at += self.wq_dma("v231", mat, b, T[10], "wqkv")
    return at

def m_s6(self, l):
    a = self.a
    XF, AC, WR, BM, cA, cB, cI, TM = 16, 128, 192, 216, 222, 224, 226, 232
    ta, tb, tc, td = "v228", "v229", "v230", "v231"
    NW = 6
    if l == 0:
        a("v_add_u32 v238, %d, %s" % (R2 + 24576 + 1024, vL16))
        for s in range(4): a("ds_read_b128 %s, v238 offset:%d" % (V(AC + 4 * s, 4), 6144 * s))
        for p in range(2):
            a("v_pk_add_f32 %s, %s, %s" % (V(AC + 2 * p, 2), V(AC + 2 * p, 2), V(AC + 4 + 2 * p, 2)))
            a("v_pk_add_f32 %s, %s, %s" % (V(AC + 8 + 2 * p, 2), V(AC + 8 + 2 * p, 2), V(AC + 12 + 2 * p, 2)))
            a("v_pk_add_f32 %s, %s, %s" % (V(AC + 2 * p, 2), V(AC + 2 * p, 2), V(AC + 8 + 2 * p, 2)))
        for q in range(4):
            self.cs_frag("v238", "v239", V(AC + q), V(AC + 4))
            a("v_accvgpr_write_b32 %s, v238" % A(aCS3 + 2 * q)); a("v_accvgpr_write_b32 %s, v239" % A(aCS3 + 2 * q + 1))
    self.tr_addr128(tc, td, "v238", False, 0)
    a("v_add_u32 %s, %d, %s" % (ta, R1, tc)); a("v_add_u32 %s, %d, %s" % (tb, R1, td))
    ad = (ta, tb, tc, td)
    seq = [(q, ks) for ks in range(28) for q in (0, 1)] + [(2, ks) for ks in range(28)] + [(3, ks) for ks in range(28)]
    def rd(n):
        q, ks = seq[n]; d = WR + 4 * (n % NW)
        a("ds_read_b64_tr_b16 %s, %s offset:%d" % (V(d, 2), ad[q], ks * 2048)); a("ds_read_b64_tr_b16 %s, %s offset:%d" % (V(d + 2, 2), ad[q], ks * 2048 + 1024))
    D = NW - 1
    for n in range(D): rd(n)
    a("s_lshr_b32 %s, %s, 1" % (T[0], sW)); a("s_mul_i32 %s, %s, 7" % (T[0], T[0])); self.flag_addr("v238", 7, T[0])
    a("s_add_u32 %s, %s, %d" % (T[1], sSG, fl_off(l, 5)))
    a("s_mul_i32 %s, %s, %d" % (T[3], sW, 28 * KB)); a("s_add_u32 %s, %s, %s" % (T[3], T[3], sSG)); a("s_add_u32 %s, %s, %d" % (T[3], T[3], X1_OFF[l]))
    a("s_lshl_b32 %s, %s, 11" % (T[4], sW)); a("s_add_u32 %s, %s, %s" % (T[4], T[4], sSG)); a("s_add_u32 %s, %s, %d" % (T[4], T[4], st_off(l, 1)))
    a("s_mul_i32 %s, %s, %d" % (T[6], sW, 112 * KB)); a("s_lshl_b32 %s, %s, 12" % (T[7], sJ)); a("s_add_u32 %s, %s, %s" % (T[6], T[6], T[7]))
    a("s_add_u32 %s, %s, %s" % (T[6], T[6], sSG)); a("s_add_u32 %s, %s, %d" % (T[6], T[6], G_OFF[l])); a("s_add_u32 %s, %s, %d" % (T[7], T[6], 56 * KB))
    self.poll("v238", T[1], "v239"); self.stamp("h5_%d" % l)
    for ks in range(28):
        if ks and ks % 4 == 0: a("s_add_u32 %s, %s, 4096" % (T[3], T[3]))
        a("buffer_load_dwordx4 %s, %s, %s, %s offen offset:%d sc1" % (V(XF + 4 * ks, 4), vL16, sWS, T[3], 1024 * (ks % 4)))
    self.put(self.stat_loads(AC + 32, T[4]))
    def store(q):
        x = AC + 16 * q
        self.mstore(["buffer_store_dwordx4 %s, %s, %s, %s offen offset:%d" % (V(x + 8 * f, 4), vL16, sWS, T[6 + (q >> 1)], 2048 * (q & 1) + 1024 * f) for f in range(2)], tag="out")
    def shadow_ops(q):
        x = AC + 16 * q; ops = []
        for g in range(0, 16, 4):
            t = [V(TM + (g & 4) + k) for k in range(4)]; xs = [V(x + g + k) for k in range(4)]
            ops += [("v_mul_f32 %s, %s, %s" % (t[k], xs[k], xs[k]), 4) for k in range(4)]
            ops += [("v_fma_f32 %s, %s, %s, %s" % (t[k], t[k], V(cB), V(cA)), 4) for k in range(4)]
            ops += [("v_mul_f32 %s, %s, %s" % (t[k], t[k], xs[k]), 4) for k in range(4)]
            ops += [("v_exp_f32 %s, %s" % (t[k], t[k]), 8) for k in range(4)]
            ops += [("v_fma_f32 %s, %s, %s, %s" % (t[k], t[k], V(cI), V(cI)), 4) for k in range(4)]
            ops += [("v_rcp_f32 %s, %s" % (t[k], t[k]), 8) for k in range(4)]
            ops += [("v_mul_f32 %s, %s, %s" % (xs[k], xs[k], t[k]), 4) for k in range(4)]
            o = x + (g & 8) + (g & 4) // 2
            ops += [("v_cvt_pk_bf16_f32 %s, %s, %s" % (V(o + k), xs[2 * k], xs[2 * k + 1]), 4) for k in range(2)]
        return ops
    fill = []; budget = [0.0]
    def fix(q): self.mfma(AC + 16 * q, A(aCS3 + 4 * (q >> 1), 4), V(BM + (0 if q & 1 else 2), 4), True)
    for n, (q, ks) in enumerate(seq):
        if n in (0, 56, 84): self.dstamp("n%d" % n)
        if n == 56:
            self.stat_reduce(AC + 32, T[4], "v238", "v239")
            self.finish_stats("v238", "v239", V(TM), "v238")
            a("v_add_f32 v238, %s, v238" % hx(f2u(1e-5))); a("v_rsq_f32 v238, v238")
            self.mean_frag(BM, V(TM), "v239")
            fix(0); fix(1)
            gelu_consts(a, "v238", cA, cB, cI)
        if n in (56, 84):
            fill = shadow_ops(q - 2); tot = sum(c for _, c in fill); budget[0] = 0.0
        self.mfma(AC + 16 * q, V(WR + 4 * (n % NW), 4), V(XF + 4 * ks, 4), ks > 0)
        if n + D < len(seq): rd(n + D)
        if fill and not (n in (56, 57)):
            budget[0] += tot / 26.0
            while fill and budget[0] >= fill[0][1] - 2:
                t, c = fill.pop(0); a(t); budget[0] -= c
        if n in (83, 111):
            fix(q)
            for t, c in fill: a(t)
            fill = []
            store(q - 2)
    self.dstamp("mf")
    for q in (2, 3):
        x = AC + 16 * q
        gelu_pk(a, x, 16, XF, cA, cB, cI)
        for f in range(2):
            for k in range(4): a("v_cvt_pk_bf16_f32 %s, %s, %s" % (V(x + 8 * f + k), V(x + 8 * f + 2 * k), V(x + 8 * f + 2 * k + 1)))
        store(q)
    self.ksplit_addr()
    self.publish(l, 6, 232)
    self.checkpoint("s6_%d" % l)

def m_s7(self, l):
    a = self.a
    AC, RG, NR = 16, 80, 35
    order = [(ks, t) for ks in range(21) for t in range(2)] + [(ks, 0) for ks in range(21, 28)] + [(ks, 1) for ks in range(21, 28)]
    sA = (T[16], T[17]); sO = (T[20], T[21])
    a("s_mul_i32 %s, %s, %d" % (sA[0], sU, 224 * KB)); a("s_mul_i32 %s, %s, %d" % (T[0], sW, 14 * KB)); a("s_add_u32 %s, %s, %s" % (sA[0], sA[0], T[0]))
    a("s_add_u32 %s, %s, %s" % (sA[0], sA[0], sSG)); a("s_add_u32 %s, %s, %d" % (sA[0], sA[0], G_OFF[l]))
    extra = []
    if l == 0:
        self.own_frag_off(sO, X_OFF)
        extra = self.wqkv_reload()
    else:
        a("v_and_b32 v232, 31, %s" % vLANE); a("v_mul_u32_u24 v232, 896, v232")
        a("v_lshrrev_b32 v233, 5, %s" % vLANE); a("v_lshl_add_u32 v232, v233, 4, v232")
        a("s_lshl_b32 %s, %s, 1" % (T[0], sR)); a("s_add_u32 %s, %s, %s" % (T[0], T[0], sU)); a("s_mul_i32 %s, %s, %d" % (T[0], T[0], 64 * 896))
        a("s_lshl_b32 %s, %s, 7" % (T[1], sC)); a("s_add_u32 %s, %s, %s" % (T[0], T[0], T[1]))
        a("s_lshl_b32 %s, %s, 5" % (T[1], sW)); a("s_add_u32 %s, %s, %s" % (sO[0], T[0], T[1]))
        a("s_add_u32 %s, %s, %d" % (sO[1], sO[0], 32 * 896))
    self.flag_addr("v238", 14, 0); a("s_add_u32 %s, %s, %d" % (T[1], sSG, fl_off(l, 6)))
    self.poll("v238", T[1], "v239"); self.stamp("h6_%d" % l)
    def load(n):
        ks, t = order[n]
        off = t * 112 * KB + (ks // 14) * 56 * KB + (ks % 14) * KB
        a("s_add_u32 %s, %s, %d" % (T[19], sA[0], off))
        a("buffer_load_dwordx4 %s, %s, %s, %s offen sc1" % (V(RG + 4 * (n % NR), 4), vL16, sWS, T[19]))
    D = 20
    for n in range(D): load(n)
    wr = self.xchg_write(AC, 0)
    ex0 = len(order) - D; per = len(extra) / float(D); done = 0
    for n, (ks, t) in enumerate(order):
        if n in (0, 1, 14, 28, 42): self.dstamp("n%d" % n)
        for f in range(2):
            self.mfma(AC + 32 * t + 16 * f, A((2 * ks + f) * 4, 4), V(RG + 4 * (n % NR), 4), ks > 0)
            if f == 0 and n + D < len(order): load(n + D)
            if f == 0 and n >= ex0:
                want = int(math.ceil(per * (n - ex0 + 1))); self.put(extra[done:want]); done = max(done, want)
            if n >= 49 and 2 * (n - 49) + f >= 5 and wr: self.put([wr.pop(0)])
    def epi7(t, x, tmp):
        r = RES + 8 * t
        for p in range(4): a("v_pk_add_f32 %s, %s, %s" % (V(r + 2 * p, 2), V(r + 2 * p, 2), V(x + 2 * p, 2)))
        if l == 0:
            self.pack_store(r, tmp, sO[t])
            self.row_stats(r, V(236 + t), tmp + 4)
        else:
            for k in range(4): a("v_cvt_pk_bf16_f32 %s, %s, %s" % (V(tmp + k), V(r + 2 * k), V(r + 2 * k + 1)))
            a("v_permlane32_swap_b32 %s, %s" % (V(tmp), V(tmp + 2))); a("v_permlane32_swap_b32 %s, %s" % (V(tmp + 1), V(tmp + 3)))
            a("buffer_store_dwordx4 %s, v232, %s, %s offen" % (V(tmp, 4), sOUT, sO[t]))
    self.ksplit_tail(AC, RG + 88, RG + 112, epi7)
    if l == 0:
        self.stats_out()
        a.wait_tag("wqkv")
        self.publish(l, 7, 232, stat=2)
    self.checkpoint("s7_%d" % l)
```

```python
import sys, math, struct
from asmkit import *
from layout import *

NAME = "interleave_layers__mha_block__mixer_s_mlp__prompt"
def f2u(x): return struct.unpack("<I", struct.pack("<f", x))[0]
def hx(x): return "0x%x" % (x & 0xffffffff)

sX, sWQ, sWO, sW1, sW2, sW3, sW4, sOUT, sDBG, sWS = [S(28 + 4 * i, 4) for i in range(10)]
sR, sJ, sU, sC, sW, sSG, sFAST, sKV = ["s%d" % i for i in range(68, 76)]
sHI, sPADV = S(90, 2), S(92, 2)
sONES, sSPIN = "s94", "s95"
sQ0, sQ1 = "s76", "s77"
sWROW = "s78"
sTB = "s79"
T = ["s%d" % i for i in range(4, 26)]
OOB = 0x7f000000
SPIN = 1 << 17
vLANE, vL16, vL4 = "v0", "v1", "v2"
CSK = 4
vM0, vR0 = 10, 12
RES = 240
aCS1, aCS3 = 240, 248

class Gen:
    def __init__(self, stop=None, stamps=False, fast=True, detail=None, opt=None):
        self.a = Asm(); self.stop = stop; self.stamps = stamps; self.fast = fast
        self.nstamp = 0; self.stamp_names = []; self.detail = detail; self.cur = None; self.opt = opt or {}
    def mfma(self, d, x, y, c):
        self.a("v_mfma_f32_32x32x16_bf16 %s, %s, %s, %s" % (V(d, 16), x, y, V(d, 16) if c else "0"))
    def stamp(self, name):
        if not self.stamps: return
        a = self.a; k = self.nstamp; self.nstamp += 1; self.stamp_names.append(name)
        a.wait_lds()
        a("s_memtime s[96:97]")
        a("s_waitcnt lgkmcnt(0)")
        a("v_writelane_b32 v3, s96, %d" % k)
    def dstamp(self, name):
        if self.detail and self.cur in self.detail: self.stamp("." + name)
    def pad(self, name):
        if self.opt.get("padat") != name: return
        a = self.a; L = a.label()
        a.wait_lds()
        a.place(L)
        a("s_memrealtime s[96:97]")
        a("s_waitcnt lgkmcnt(0)")
        a("s_sub_u32 s96, s96, s98")
        a("s_cmp_lt_u32 s96, %d" % (100 * int(self.opt["padus"])))
        a("s_cbranch_scc1 %s" % L)
    def checkpoint(self, name):
        self.pad(name)
        self.stamp(name)
        if self.stop == name:
            self.a("s_waitcnt vmcnt(0) lgkmcnt(0)"); self.a("s_branch L_end")
    def poll(self, vaddr, soff, vt, sleep=0):
        a = self.a; L = a.label()
        a("s_mov_b32 %s, %d" % (sSPIN, SPIN))
        a.place(L)
        if sleep: a("s_sleep %d" % sleep)
        a("buffer_load_dword %s, %s, %s, %s offen sc1" % (vt, vaddr, sWS, soff))
        a("s_sub_u32 %s, %s, 1" % (sSPIN, sSPIN))
        a("s_cbranch_scc1 L_abort")
        a("s_waitcnt vmcnt(0)")
        a("v_cmp_eq_u32 vcc, 0, %s" % vt)
        a("s_cbranch_vccnz %s" % L)
    def mstore(self, lines, tag=None, cond=False):
        a = self.a
        if not self.fast:
            for l in lines: a(l + " sc1", tag=tag, cond=cond)
            return
        L1, L2 = a.label(), a.label()
        for l in lines: a.wait_regs(*[x.strip() for x in l.split(None, 1)[1].split(",")[:2]])
        a("s_cmp_eq_u32 %s, 0" % sFAST)
        a("s_cbranch_scc0 %s" % L1)
        for l in lines: a(l + " sc1", cond=True)
        a("s_branch %s" % L2)
        a.place(L1)
        for l in lines: a(l, tag=tag, cond=cond)
        a.place(L2)
    def publish(self, l, hop, vt, stat=None):
        a = self.a
        self.dstamp("prep")
        a.wait_tag("out")
        self.dstamp("ack")
        a.barrier()
        L = a.label()
        a("s_cmp_eq_u32 %s, 0" % sW)
        a("s_cbranch_scc0 %s" % L)
        a("s_lshl_b32 %s, %s, 2" % (T[0], sJ))
        a("s_add_u32 %s, %s, %s" % (T[0], T[0], sSG))
        a("s_add_u32 %s, %s, %d" % (T[0], T[0], fl_off(l, hop)))
        a("v_mov_b32 %s, 1" % V(vt))
        a("s_mov_b64 exec, 1")
        self.mstore(["buffer_store_dword %s, off, %s, %s" % (V(vt), sWS, T[0])], cond=True)
        a("s_mov_b64 exec, -1")
        a.place(L)
        if stat is not None:
            L = a.label()
            a("s_cmp_ge_u32 %s, 2" % sW)
            a("s_cbranch_scc0 %s" % L)
            a("s_and_b32 %s, %s, 1" % (T[0], sW))
            a("s_lshl_b32 %s, %s, 8" % (T[1], T[0]))
            a("s_add_u32 %s, %s, %d" % (T[1], T[1], R2 + 24576))
            a("v_add_u32 %s, %s, %s" % (V(vt), T[1], vL4))
            a("ds_read2st64_b32 %s, %s offset0:0 offset1:24" % (V(vt + 2, 2), V(vt)))
            a("ds_read2st64_b32 %s, %s offset0:48 offset1:72" % (V(vt + 4, 2), V(vt)))
            a("s_lshl_b32 %s, %s, 1" % (T[1], sU))
            a("s_add_u32 %s, %s, %s" % (T[0], T[0], T[1]))
            a("s_lshl_b32 %s, %s, 11" % (T[0], T[0]))
            a("s_lshl_b32 %s, %s, 8" % (T[1], sC))
            a("s_add_u32 %s, %s, %s" % (T[0], T[0], T[1]))
            a("s_add_u32 %s, %s, %s" % (T[0], T[0], sSG))
            a("s_add_u32 %s, %s, %d" % (T[0], T[0], st_off(l, stat)))
            a("v_add_f32 %s, %s, %s" % (V(vt + 2), V(vt + 2), V(vt + 3)))
            a("v_add_f32 %s, %s, %s" % (V(vt + 4), V(vt + 4), V(vt + 5)))
            a("v_add_f32 %s, %s, %s" % (V(vt + 2), V(vt + 2), V(vt + 4)))
            self.mstore(["buffer_store_dword %s, %s, %s, %s offen" % (V(vt + 2), vL4, sWS, T[0])], cond=True)
            a.place(L)
    def flag_addr(self, v, n, first):
        a = self.a
        a("v_min_u32 %s, %d, %s" % (v, n - 1, vLANE))
        if first not in (0, "0"): a("v_add_u32 %s, %s, %s" % (v, first, v))
        a("v_lshlrev_b32 %s, 2, %s" % (v, v))
    def tr_addr128(self, va, vb, vt, rot, base):
        a = self.a
        a("v_bfe_u32 %s, %s, 4, 1" % (va, vLANE))
        if rot: a("v_xor_b32 %s, %s, %s" % (va, sW, va))
        a("v_lshlrev_b32 %s, 5, %s" % (va, va))
        a("v_and_b32 %s, 3, %s" % (vt, vLANE))
        a("v_lshl_add_u32 %s, %s, 3, %s" % (va, vt, va))
        a("v_bfe_u32 %s, %s, 3, 1" % (vt, vLANE))
        a("v_lshlrev_b32 %s, 6, %s" % (vt, vt))
        a("v_xor_b32 %s, %s, %s" % (va, vt, va))
        a("v_bfe_u32 %s, %s, 2, 2" % (vt, vLANE))
        a("v_lshl_add_u32 %s, %s, 7, %s" % (va, vt, va))
        a("v_lshrrev_b32 %s, 5, %s" % (vt, vLANE))
        a("v_lshl_add_u32 %s, %s, 9, %s" % (va, vt, va))
        if base not in (0, "0"): a("v_add_u32 %s, %s, %s" % (va, base, va))
        a("v_xor_b32 %s, 64, %s" % (vb, va))
    def dma_src128(self, v, vt, pitch, n=4):
        a = self.a
        a("v_bfe_u32 %s, %s, 4, 1" % (vt, vLANE))
        a("v_lshlrev_b32 %s, 2, %s" % (vt, vt))
        a("v_and_b32 %s, 7, %s" % (V(v), vLANE))
        a("v_xor_b32 %s, %s, %s" % (V(v), vt, V(v)))
        a("v_lshlrev_b32 %s, 4, %s" % (V(v), V(v)))
        a("v_lshrrev_b32 %s, 3, %s" % (vt, vLANE))
        a("v_mul_u32_u24 %s, %d, %s" % (vt, pitch, vt))
        a("v_add_u32 %s, %s, %s" % (V(v), vt, V(v)))
        for k in range(1, n):
            a("v_add_u32 %s, %d, %s" % (V(v + k), k * (8 * pitch - 1024), V(v)))
    def dma_atoms(self, srd, v, pitch, src0, lds0, soff, tag, n=14):
        at = []
        for k in range(n):
            if k % 4 == 0:
                at.append(("s_add_u32 %s, %s, %d" % (soff, src0[0], src0[1] + k * 8 * pitch), None))
                at.append(("s_add_u32 m0, %s, %d" % (lds0[0], lds0[1] + k * 1024), None))
            at.append(("buffer_load_dwordx4 %s, %s, %s offen offset:%d lds" % (V(v + k % 4), srd, soff, 1024 * (k % 4)), tag))
        return at
    def put(self, atoms):
        for t, tag in atoms:
            if callable(t): t()
            else: self.a(t, tag=tag)
    def finish_stats(self, vs, vq, vmean, vvar):
        a = self.a
        a("v_mul_f32 %s, %s, %s" % (vmean, hx(f2u(1.0 / 448)), vs))
        a("v_mul_f32 %s, %s, %s" % (vq, hx(f2u(1.0 / 448)), vq))
        a("v_fma_f32 %s, -%s, %s, %s" % (vvar, vmean, vmean, vq))
        a("v_max_f32 %s, 0, %s" % (vvar, vvar))
    def mean_frag(self, bm, vmean, vt):
        a = self.a
        for k in (0, 1, 4, 5): a("v_mov_b32 %s, 0" % V(bm + k))
        a("v_cvt_pk_bf16_f32 %s, -%s, -%s" % (V(bm + 2), vmean, vmean))
        a("v_lshlrev_b32 %s, 16, %s" % (vt, V(bm + 2)))
        a("v_add_f32 %s, %s, %s" % (vt, vmean, vt))
        a("v_cvt_pk_bf16_f32 %s, -%s, 0" % (V(bm + 3), vt))
    def cs_frag(self, d0, d1, vcs, vt):
        a = self.a
        a("v_cvt_pk_bf16_f32 %s, %s, 0" % (d1, vcs))
        a("v_lshlrev_b32 %s, 16, %s" % (vt, d1))
        a("v_sub_f32 %s, %s, %s" % (vt, vcs, vt))
        a("v_cvt_pk_bf16_f32 %s, %s, %s" % (d0, vcs, vt))
    def stat_loads(self, v, soff):
        return [("buffer_load_dword %s, %s, %s, %s offen offset:%d sc1" % (V(v + c), vL4, sWS, soff, 256 * c), None) for c in range(7)]
    def stat_reduce(self, v, soff, vs, vq):
        a = self.a; L, L2 = a.label(), a.label()
        a("s_mov_b32 %s, %d" % (sSPIN, SPIN))
        a.wait_regs(V(v, 7))
        a.place(L)
        a("v_max3_u32 %s, %s, %s, %s" % (vq, V(v), V(v + 1), V(v + 2)))
        a("v_max3_u32 %s, %s, %s, %s" % (vq, vq, V(v + 3), V(v + 4)))
        a("v_max3_u32 %s, %s, %s, %s" % (vq, vq, V(v + 5), V(v + 6)))
        a("v_cmp_eq_u32 vcc, -1, %s" % vq)
        a("s_cbranch_vccz %s" % L2)
        for t, _ in self.stat_loads(v, soff): a(t, cond=True)
        a("s_sub_u32 %s, %s, 1" % (sSPIN, sSPIN))
        a("s_cbranch_scc1 L_abort")
        a.ins.append(Ins("s_waitcnt vmcnt(0)"))
        a("s_branch %s" % L)
        a.place(L2)
        a("v_add_f32 %s, %s, %s" % (vs, V(v), V(v + 1)))
        a("v_add_f32 %s, %s, %s" % (vq, V(v + 2), V(v + 3)))
        a("v_add_f32 %s, %s, %s" % (vs, vs, V(v + 4)))
        a("v_add_f32 %s, %s, %s" % (vq, vq, V(v + 5)))
        a("v_add_f32 %s, %s, %s" % (vs, vs, V(v + 6)))
        a("v_add_f32 %s, %s, %s" % (vs, vs, vq))
        a("v_mov_b32 %s, %s" % (vq, vs))
        a("v_permlane32_swap_b32 %s, %s" % (vs, vq))

    def prologue(self):
        a = self.a
        a("s_cmp_ge_u32 s2, 256")
        a("s_cbranch_scc1 L_exit")
        if "padat" in self.opt: a("s_memrealtime s[98:99]")
        a("s_load_dwordx16 s[4:19], s[0:1], 0")
        a("s_load_dwordx4 s[20:23], s[0:1], 64")
        a("s_load_dwordx2 s[24:25], s[0:1], 80")
        a("v_lshrrev_b32 v1, 6, v0")
        a("v_and_b32 v0, 63, v0")
        a("v_readfirstlane_b32 %s, v1" % sW)
        a("v_lshlrev_b32 %s, 4, %s" % (vL16, vLANE))
        a("v_lshlrev_b32 %s, 2, %s" % (vL4, vLANE))
        if self.stamps: a("v_mov_b32 v3, 0")
        a("s_and_b32 s3, s2, 7")
        a("s_lshl_b32 s3, s3, 1")
        a("s_lshr_b32 %s, s2, 7" % sR)
        a("s_add_u32 %s, %s, s3" % (sR, sR))
        a("s_lshr_b32 %s, s2, 3" % sJ)
        a("s_and_b32 %s, %s, 15" % (sJ, sJ))
        a("s_cmp_ge_u32 %s, 7" % sJ)
        a("s_cselect_b32 %s, 1, 0" % sU)
        a("s_cselect_b32 s3, 7, 0")
        a("s_sub_u32 %s, %s, s3" % (sC, sJ))
        a("s_cmp_ge_u32 %s, 7" % sC)
        a("s_cselect_b32 s3, 7, 0")
        a("s_sub_u32 %s, %s, s3" % (sC, sC))
        a("s_lshl_b32 %s, %s, 21" % (sSG, sR))
        a("s_mov_b32 s90, 0\ns_mov_b32 s91, -1\ns_mov_b32 s92, 0xf0000000\ns_mov_b32 s93, 0xf0000000")
        a("s_mov_b32 %s, 0x3f803f80" % sONES)
        a("s_mov_b32 %s, 0" % sFAST)
        a("s_mul_i32 %s, %s, 14336" % (sQ0, sW))
        a("s_add_u32 %s, %s, %d" % (sQ1, sQ0, R1))
        a("s_mul_i32 %s, %s, %d" % (sWROW, sW, 112 * 896))
        a("s_lshl_b32 s3, %s, 7" % sC)
        a("s_add_u32 %s, %s, s3" % (sWROW, sWROW))
        a("s_mul_i32 %s, %s, %d" % (sTB, sU, 2 * 28 * KB))
        a("s_add_u32 %s, %s, %s" % (sTB, sTB, sSG))
        a("s_lshl_b32 %s, %s, 19" % (sKV, sJ))
        a("s_lshl_b32 s3, %s, 12" % sW)
        a("s_add_u32 %s, %s, s3" % (sKV, sKV))
        a("s_add_u32 %s, %s, %d" % (sKV, sKV, KV_OFF))
        sizes = [(28, 4, 2048 * 896), (32, 6, 448 * 2688), (36, 8, 448 * 896), (40, 12, 448 * 896), (44, 14, 448 * 896),
                 (48, 16, 448 * 3584), (52, 18, 1792 * 896), (56, 20, 2048 * 896), (60, 22, 256), (64, 24, WS_BYTES)]
        a("s_waitcnt lgkmcnt(0)")
        for d, p, n in sizes:
            a("s_mov_b32 s%d, s%d\ns_and_b32 s%d, s%d, 0xffff\ns_mov_b32 s%d, %s\ns_mov_b32 s%d, 0x20000" % (d, p, d + 1, p + 1, d + 2, hx(n), d + 3))
        self.stamp("start")

    def init_stores(self):
        a = self.a
        a("v_mov_b32 v16, -1\nv_mov_b32 v17, -1\nv_mov_b32 v18, -1\nv_mov_b32 v19, -1\nv_mov_b32 v20, 0")
        a("s_lshl_b32 %s, %s, 2" % (T[0], sJ)); a("s_add_u32 %s, %s, %s" % (T[0], T[0], sW))
        a("s_lshl_b32 %s, %s, 10" % (T[1], T[0])); a("s_add_u32 %s, %s, %s" % (T[1], T[1], sSG)); a("s_add_u32 %s, %s, %d" % (T[1], T[1], ST_OFF))
        a("buffer_store_dwordx4 v[16:19], %s, %s, %s offen sc1" % (vL16, sWS, T[1]), tag="init")
        a("s_lshl_b32 %s, %s, 6" % (T[1], sR)); a("s_add_u32 %s, %s, %s" % (T[1], T[1], T[0]))
        a("s_lshl_b32 %s, %s, 8" % (T[1], T[1])); a("s_add_u32 %s, %s, %d" % (T[1], T[1], H2_OFF))
        a("buffer_store_dword v16, %s, %s, %s offen sc1" % (vL4, sWS, T[1]), tag="init")
        a("s_lshl_b32 %s, %s, 4" % (T[1], T[0])); a("s_add_u32 %s, %s, %s" % (T[1], T[1], sR))
        a("s_lshl_b32 %s, %s, 7" % (T[1], T[1])); a("s_add_u32 %s, %s, %d" % (T[1], T[1], F1_OFF))
        a("s_lshl_b32 %s, %s, 5" % (T[2], T[0])); a("s_add_u32 %s, %s, %s" % (T[2], T[2], sSG)); a("s_add_u32 %s, %s, %d" % (T[2], T[2], FL_OFF - 32))
        a("v_lshlrev_b32 v21, 17, %s" % vLANE); a("v_add_u32 v21, %s, v21" % T[1])
        a("v_add_u32 v22, %s, %s" % (T[2], vL4))
        a("v_cmp_gt_u32 vcc, 8, %s" % vLANE)
        a("v_cndmask_b32 v21, v22, v21, vcc")
        a("s_mov_b64 exec, 0xff03")
        a("buffer_store_dword v20, v21, %s, 0 offen sc1" % sWS, tag="init")
        a("s_mov_b64 exec, -1")

    def handshake_store(self):
        a = self.a; L = a.label()
        a("s_cmp_eq_u32 %s, 0" % sW)
        a("s_cbranch_scc0 %s" % L)
        a("s_getreg_b32 %s, hwreg(HW_REG_XCC_ID, 0, 4)" % T[0])
        a("s_add_u32 %s, %s, 1" % (T[0], T[0]))
        a("v_mov_b32 v239, %s" % T[0])
        a("s_lshl_b32 %s, %s, 4" % (T[0], sR)); a("s_add_u32 %s, %s, %s" % (T[0], T[0], sJ))
        a("s_mov_b64 exec, 1")
        a("buffer_store_byte v239, off, %s, %s sc1" % (sDBG, T[0]), cond=True)
        a("s_mov_b64 exec, -1")
        a.place(L)
    def handshake_check(self, vt):
        a = self.a; L = a.label()
        a("s_mov_b32 %s, %d" % (sSPIN, SPIN))
        a("s_mov_b32 %s, 0x01010101" % T[0]); a("s_mov_b32 %s, 0x80808080" % T[1])
        a.place(L)
        a("buffer_load_dword %s, %s, %s, 0 offen sc1" % (V(vt), vL4, sDBG))
        a("s_sub_u32 %s, %s, 1" % (sSPIN, sSPIN))
        a("s_cbranch_scc1 L_abort")
        a("s_waitcnt vmcnt(0)")
        a("v_subrev_u32 %s, %s, %s" % (V(vt + 1), T[0], V(vt)))
        a("v_and_b32 %s, %s, %s" % (V(vt + 1), T[1], V(vt + 1)))
        a("v_cmp_ne_u32 vcc, 0, %s" % V(vt + 1))
        a("s_cbranch_vccnz %s" % L)
        if self.fast:
            a("s_getreg_b32 %s, hwreg(HW_REG_XCC_ID, 0, 4)" % T[1])
            a("s_add_u32 %s, %s, 1" % (T[1], T[1]))
            a("s_mul_i32 %s, %s, %s" % (T[1], T[1], T[0]))
            a("v_cmp_eq_u32 vcc, %s, %s" % (T[1], V(vt)))
            a("s_lshl_b32 %s, %s, 2" % (T[0], sR))
            a("s_lshr_b64 %s, vcc, %s" % (S(6, 2), T[0]))
            a("s_and_b32 s6, s6, 15")
            a("s_cmp_eq_u32 s6, 15")
            a("s_cselect_b32 %s, 1, 0" % sFAST)

    XF, AK, AV, AQ, WR, KVB, BM = 16, 128, 144, 160, 176, 208, 224
    WKL, WVL, WQL = 0, 28672, 57344
    def wq_src(self, v, vt):
        a = self.a
        a("v_lshrrev_b32 %s, 2, %s" % (vt, vLANE)); a("v_mul_u32_u24 %s, 2688, %s" % (vt, vt))
        a("v_and_b32 %s, 3, %s" % (v, vLANE)); a("v_lshl_add_u32 %s, %s, 4, %s" % (v, v, vt))
        a("s_mul_i32 %s, %s, 56" % (T[0], sJ)); a("s_and_b32 %s, %s, 0xfffffff0" % (T[0], T[0]))
        a("s_mul_i32 %s, %s, %d" % (T[1], sW, 16 * 2688)); a("s_add_u32 %s, %s, %s" % (T[0], T[0], T[1]))
        a("v_add_u32 %s, %s, %s" % (v, T[0], v))
    def wq_dma(self, v, mat, b, sM, tag):
        lds = {0: self.WQL, 1: self.WKL, 2: self.WVL}[mat]
        return [("s_mov_b32 %s, %d" % (T[2], mat * 896 + b * 64 * 2688), None),
                ("s_add_u32 m0, %s, %d" % (sM, lds + b * 4096), None),
                ("buffer_load_dwordx4 %s, %s, %s offen lds" % (v, sWQ, T[2]), tag)]
    def tr_addr64(self, v, vt, natural):
        a = self.a
        a("v_bfe_u32 %s, %s, 4, 1" % (v, vLANE)); a("v_lshlrev_b32 %s, 5, %s" % (v, v))
        a("v_and_b32 %s, 3, %s" % (vt, vLANE)); a("v_lshl_add_u32 %s, %s, 3, %s" % (v, vt, v))
        a("v_bfe_u32 %s, %s, 2, 2" % (vt, vLANE)); a("v_lshl_add_u32 %s, %s, 6, %s" % (v, vt, v))
        a("v_lshrrev_b32 %s, 5, %s" % (vt, vLANE)); a("v_lshl_add_u32 %s, %s, %d, %s" % (v, vt, 9 if natural else 8, v))
        a("s_and_b32 %s, %s, 1" % (T[0], sJ)); a("s_lshl_b32 %s, %s, 3" % (T[0], T[0]))
        a("v_add_u32 %s, %s, %s" % (v, T[0], v))
    def tr64(self, dst, v, off, natural):
        self.a("ds_read_b64_tr_b16 %s, %s offset:%d" % (V(dst, 2), v, off))
        self.a("ds_read_b64_tr_b16 %s, %s offset:%d" % (V(dst + 2, 2), v, off + (256 if natural else 512)))

    def s1_first(self):
        a = self.a; XF, AK, AV, AQ, WR = self.XF, self.AK, self.AV, self.AQ, self.WR
        XS = 57344
        vXS, vWS, vTR, vTO, vS, vQ = "v230", "v231", "v232", "v233", "v234", "v235"
        XR = 224; CS = 236; sM, sXM, sXO = T[10], T[11], T[12]
        slot = lambda b: XS + (b if b < 6 else 2) * 16384
        a("v_lshrrev_b32 v16, 3, %s" % vLANE); a("v_mul_u32_u24 v17, 896, v16")
        a("v_lshrrev_b32 v16, 1, v16"); a("v_and_b32 v18, 7, %s" % vLANE); a("v_xor_b32 v16, v16, v18")
        a("v_lshl_add_u32 %s, v16, 4, v17" % vXS)
        a("v_xor_b32 v229, 64, %s" % vXS)
        self.wq_src(vWS, "v16")
        a("s_lshl_b32 %s, %s, 10" % (sM, sW)); a("s_lshl_b32 %s, %s, 12" % (sXM, sW))
        a("s_lshl_b32 %s, %s, 2" % (sXO, sR)); a("s_add_u32 %s, %s, %s" % (sXO, sXO, sW)); a("s_mul_i32 %s, %s, %d" % (sXO, sXO, 32 * 896))
        def xdma(b):
            at = []
            for p in range(4):
                at.append(("s_add_u32 %s, %s, %d" % (T[2], sXO, b * 128 + p * 8 * 896), None))
                at.append(("s_add_u32 m0, %s, %d" % (sXM, slot(b) + p * 1024), None))
                at.append(("buffer_load_dwordx4 %s, %s, %s offen lds" % ("v229" if p & 1 else vXS, sX, T[2]), "x%d" % b))
            return at
        for b in range(7):
            self.put(self.wq_dma(vWS, 1, b, sM, "w%d" % b) + self.wq_dma(vWS, 2, b, sM, "w%d" % b))
            if b < 6: self.put(xdma(b))
            if b == 0: self.init_stores()
        self.tr_addr64(vTR, "v16", True)
        a("v_add_u32 %s, %s, %s" % (vTO, sM, vTR))
        a("v_and_b32 v16, 31, %s" % vLANE); a("v_lshrrev_b32 v17, 5, %s" % vLANE); a("v_bfe_u32 v18, %s, 1, 3" % vLANE)
        a("v_xor_b32 v17, v17, v18"); a("v_lshlrev_b32 v17, 4, v17"); a("v_lshl_add_u32 v17, v16, 7, v17")
        a("v_add_u32 v17, %s, v17" % sXM); a("v_add_u32 %s, %d, v17" % (V(XR), XS))
        for s in range(1, 4): a("v_xor_b32 %s, %d, %s" % (V(XR + s), 32 * s, V(XR)))
        for r_ in (vS, vQ, V(CS), V(CS + 1), V(CS + 2)): a("v_mov_b32 %s, 0" % r_)
        for b in range(7):
            a.wait_tag("w%d" % b)
            self.tr64(AQ, vTO, self.WKL + b * 4096, True); self.tr64(AQ + 4, vTO, self.WVL + b * 4096, True)
            a.wait_tag("x%d" % b)
            so = slot(b) - XS
            for s in range(4):
                if so + 0 < 65536: a("ds_read_b128 %s, %s offset:%d" % (V(XF + 16 * b + 4 * s, 4), V(XR + s), so))
                else:
                    a("v_add_u32 v239, %d, %s" % (65536, V(XR + s)))
                    a("ds_read_b128 %s, v239 offset:%d" % (V(XF + 16 * b + 4 * s, 4), so - 65536))
            for k in range(4):
                a("v_dot2c_f32_bf16 %s, %s, %s" % (V(CS), sONES, V(AQ + k)))
                a("v_dot2c_f32_bf16 %s, %s, %s" % (V(CS + 1), sONES, V(AQ + 4 + k)))
            if b == 1: a.wait_tag("init")
            if b == 6:
                a("s_lshl_b32 %s, %s, 2" % (T[0], sW)); a("s_add_u32 %s, %s, %d" % (T[0], T[0], 155648))
                a("v_add_u32 v239, %s, %s" % (T[0], vL16))
                a("ds_write_b32 v239, %s" % V(CS)); a("ds_write_b32 v239, %s offset:1024" % V(CS + 1))
            a.barrier()
            if b == 1: self.handshake_store()
            if b == 2:
                self.put(xdma(6))
                for bb in range(7): self.put(self.wq_dma(vWS, 0, bb, sM, "wq"))
            for s in range(4):
                self.tr64(WR + 8 * s, vTR, self.WKL + (4 * b + s) * 1024, True)
                self.tr64(WR + 8 * s + 4, vTR, self.WVL + (4 * b + s) * 1024, True)
            for k in range(16):
                a("v_dot2c_f32_bf16 %s, %s, %s" % (vS, sONES, V(XF + 16 * b + k)))
                a("v_dot2c_f32_bf16 %s, %s, %s" % (vQ, V(XF + 16 * b + k), V(XF + 16 * b + k)))
            for s in range(4):
                x = V(XF + 16 * b + 4 * s, 4); c = not (b == 0 and s == 0)
                self.mfma(AK, V(WR + 8 * s, 4), x, c)
                self.mfma(AV, x, V(WR + 8 * s + 4, 4), c)
        a("v_add_u32 v239, %d, %s" % (155648, vL16))
        a("ds_read_b128 %s, v239" % V(AQ, 4)); a("ds_read_b128 %s, v239 offset:1024" % V(AQ + 4, 4))
        a("v_mov_b32 v230, %s" % vS); a("v_mov_b32 v231, %s" % vQ)
        a("v_permlane32_swap_b32 v230, %s" % vS); a("v_permlane32_swap_b32 v231, %s" % vQ)
        a("v_add_f32 %s, v230, %s" % (vS, vS)); a("v_add_f32 %s, v231, %s" % (vQ, vQ))
        for m in range(2):
            b0 = AQ + 4 * m
            a("v_add_f32 %s, %s, %s" % (V(b0), V(b0), V(b0 + 1))); a("v_add_f32 %s, %s, %s" % (V(b0 + 2), V(b0 + 2), V(b0 + 3)))
            a("v_add_f32 %s, %s, %s" % (V(b0), V(b0), V(b0 + 2)))
            self.cs_frag(V(CSK + 2 * m), V(CSK + 2 * m + 1), V(b0), V(b0 + 1))
        def before_q():
            a.wait_tag("wq")
            a("v_add_u32 v230, %d, %s" % (self.WQL, vTO))
            for b in range(7): self.tr64(WR + 4 * b, "v230", b * 4096, True)
            for k in range(28): a("v_dot2c_f32_bf16 %s, %s, %s" % (V(CS + 2), sONES, V(WR + k)))
            a("s_lshl_b32 %s, %s, 2" % (T[0], sW)); a("s_add_u32 %s, %s, %d" % (T[0], T[0], 155648 + 2048))
            a("v_add_u32 v239, %s, %s" % (T[0], vL16))
            a("ds_write_b32 v239, %s" % V(CS + 2))
            a.barrier()
            a("v_add_u32 v239, %d, %s" % (155648 + 2048, vL16))
            a("ds_read_b128 %s, v239" % V(AK, 4))
            a("v_add_f32 %s, %s, %s" % (V(AK), V(AK), V(AK + 1))); a("v_add_f32 %s, %s, %s" % (V(AK + 2), V(AK + 2), V(AK + 3)))
            a("v_add_f32 %s, %s, %s" % (V(AK), V(AK), V(AK + 2)))
            self.cs_frag(V(CSK + 4), V(CSK + 5), V(AK), V(AK + 1))
        self.s1_tail(0, vS, vQ, vTR, True, before_q)

    def s1_second(self):
        a = self.a; XF, AK, AV, AQ, WR = self.XF, self.AK, self.AV, self.AQ, self.WR
        vTR, vS, vQ = "v232", "v234", "v235"
        self.tr_addr64(vTR, "v16", False)
        a("s_lshr_b32 %s, %s, 1" % (T[0], sW)); a("s_mul_i32 %s, %s, 7" % (T[0], T[0]))
        self.flag_addr("v16", 7, T[0])
        a("s_add_u32 %s, %s, %d" % (T[1], sSG, fl_off(0, 7)))
        a("s_mul_i32 %s, %s, %d" % (T[3], sW, 28 * KB)); a("s_add_u32 %s, %s, %s" % (T[3], T[3], sSG)); a("s_add_u32 %s, %s, %d" % (T[3], T[3], X_OFF))
        a("s_lshl_b32 %s, %s, 11" % (T[4], sW)); a("s_add_u32 %s, %s, %s" % (T[4], T[4], sSG)); a("s_add_u32 %s, %s, %d" % (T[4], T[4], st_off(0, 2)))
        D = 3
        def rd(ks):
            self.tr64(WR + 8 * (ks % 4), vTR, self.WKL + ks * 1024, False); self.tr64(WR + 8 * (ks % 4) + 4, vTR, self.WVL + ks * 1024, False)
        for ks in range(D): rd(ks)
        self.poll("v16", T[1], "v17")
        self.stamp("h7")
        for ks in range(28):
            if ks and ks % 4 == 0: a("s_add_u32 %s, %s, 4096" % (T[3], T[3]))
            a("buffer_load_dwordx4 %s, %s, %s, %s offen offset:%d sc1" % (V(XF + 4 * ks, 4), vL16, sWS, T[3], 1024 * (ks % 4)))
        self.put(self.stat_loads(AQ, T[4]))
        for ks in range(28):
            x = V(XF + 4 * ks, 4); w = WR + 8 * (ks % 4)
            self.mfma(AK, V(w, 4), x, ks > 0)
            if ks + D < 28: rd(ks + D)
            self.mfma(AV, x, V(w + 4, 4), ks > 0)
        self.stat_reduce(AQ, T[4], vS, vQ)
        self.s1_tail(1, vS, vQ, vTR, False, lambda: None)

    def s1_tail(self, l, vS, vQ, vTR, natural, before_q):
        a = self.a; XF, AK, AV, AQ, WR, KVB, BM = self.XF, self.AK, self.AV, self.AQ, self.WR, self.KVB, self.BM
        vMean, vRS = "v230", 236
        self.finish_stats(vS, vQ, vMean, vS)
        a("v_add_f32 %s, %s, %s" % (vS, hx(f2u(1e-5)), vS))
        keep = None
        a("v_rsq_f32 %s, %s" % ("v234", vS))
        vRr = "v234"
        self.mean_frag(BM, vMean, "v231")
        a("s_lshl_b32 %s, %s, 8" % (T[0], sW)); a("s_add_u32 %s, %s, %d" % (T[0], T[0], R2))
        a("v_add_u32 v231, %s, %s" % (T[0], vL4))
        a("ds_write_b32 v231, %s" % vRr)
        self.mfma(AK, V(CSK, 4), V(BM + 2, 4), True)
        self.mfma(AV, V(BM, 4), V(CSK, 4), True)
        a("v_lshrrev_b32 v231, 5, %s" % vLANE); a("v_lshlrev_b32 v231, 4, v231"); a("v_add_u32 v231, %s, v231" % T[0])
        a.wait_lds()
        for g in range(4): a("ds_read_b128 %s, v231 offset:%d" % (V(AQ + 4 * g, 4), 32 * g))
        a("v_mov_b32 v230, 0"); a("v_and_b32 v231, 31, %s" % vLANE); a("v_cmp_eq_u32 vcc, 28, v231")
        a("v_mov_b32 v231, %s" % sONES); a("v_cndmask_b32 v231, v230, v231, vcc")
        a("s_lshl_b32 %s, %s, 14" % (T[1], sR)); a("s_add_u32 %s, %s, %s" % (T[1], T[1], sKV))
        if l: a("s_add_u32 %s, %s, %d" % (T[1], T[1], 256 * KB))
        pkmul1 = lambda d, s: a("v_pk_mul_f32 %s, %s, %s op_sel_hi:[1,0]" % (V(d, 2), V(d, 2), s))
        for k in range(8): pkmul1(AK + 2 * k, "v[234:235]")
        for k in range(8): a("v_cvt_pk_bf16_f32 %s, %s, %s" % (V(KVB + k), V(AK + 2 * k), V(AK + 2 * k + 1)))
        for k in (6, 7): a("v_cndmask_b32 %s, %s, v230, %s" % (V(KVB + k), V(KVB + k), sHI))
        for f in range(2): a("buffer_store_dwordx4 %s, %s, %s, %s offen offset:%d sc1" % (V(KVB + 4 * f, 4), vL16, sWS, T[1], 1024 * f), tag="kv")
        for k in range(8): a("v_pk_mul_f32 %s, %s, %s" % (V(AV + 2 * k, 2), V(AV + 2 * k, 2), V(AQ + 2 * k, 2)))
        for k in range(8): a("v_cvt_pk_bf16_f32 %s, %s, %s" % (V(KVB + 8 + k), V(AV + 2 * k), V(AV + 2 * k + 1)))
        for k in range(8): a("v_cndmask_b32 %s, %s, v231, %s" % (V(KVB + 8 + k), V(KVB + 8 + k), sPADV))
        for f in range(2, 4): a("buffer_store_dwordx4 %s, %s, %s, %s offen offset:%d sc1" % (V(KVB + 4 * f, 4), vL16, sWS, T[1], 1024 * f), tag="kv")
        self.stamp("kv%d" % l)
        before_q()
        a("v_add_u32 v233, %d, %s" % (self.WQL, vTR))
        D = 6
        rd = lambda ks: self.tr64(WR + 4 * (ks % 8), "v233", ks * 1024, natural)
        for ks in range(D): rd(ks)
        a("s_lshl_b32 %s, %s, 2" % (T[0], sJ)); a("s_add_u32 %s, %s, %s" % (T[0], T[0], sW)); a("s_lshl_b32 %s, %s, 11" % (T[5], T[0]))
        a("s_add_u32 %s, %s, %d" % (T[5], T[5], F1_OFF + l * 128 * KB))
        a("s_lshl_b32 %s, %s, 7" % (T[0], sR)); a("s_add_u32 %s, %s, %s" % (T[0], T[0], T[5]))
        a("v_mov_b32 v230, 1")
        for ks in range(28):
            self.mfma(AQ, V(WR + 4 * (ks % 8), 4), V(XF + 4 * ks, 4), ks > 0)
            if ks + D < 28: rd(ks + D)
        self.mfma(AQ, V(CSK + 2, 4), V(BM, 4), True)
        a.wait_tag("kv")
        a("s_mov_b64 exec, 1")
        a("buffer_store_dword v230, off, %s, %s sc1" % (sWS, T[0]))
        a("s_mov_b64 exec, -1")
        a("v_mul_f32 v234, %s, v234" % hx(f2u(28 ** -0.5 * math.log2(math.e))))
        a("v_mov_b32 v230, 0")
        a("s_lshl_b32 %s, %s, 11" % (T[0], sW)); a("s_add_u32 %s, %s, %d" % (T[0], T[0], R2 + 8192))
        a("v_add_u32 v231, %s, %s" % (T[0], vL16))
        for k in range(8): pkmul1(AQ + 2 * k, "v[234:235]")
        for k in range(8): a("v_cvt_pk_bf16_f32 %s, %s, %s" % (V(40 + k), V(AQ + 2 * k), V(AQ + 2 * k + 1)))
        for k in (6, 7): a("v_cndmask_b32 %s, %s, v230, %s" % (V(40 + k), V(40 + k), sHI))
        a("ds_write_b128 v231, v[40:43]"); a("ds_write_b128 v231, v[44:47] offset:1024")
        a.barrier()
        for q in range(3):
            a("v_xor_b32 v230, %d, v231" % ((q + 1) * 2048))
            a("ds_read_b128 %s, v230" % V(16 + 8 * q, 4)); a("ds_read_b128 %s, v230 offset:1024" % V(20 + 8 * q, 4))
        self.checkpoint("s1_%d" % l)

    def attention(self, l):
        a = self.a
        Q, O, SS, P = 16, 48, 112, 144
        KB_ = [208, 176, 192, 160]; NB = 4
        DS, vTa, vTb = 224, "v228", "v229"
        sK, sKn, sD = T[6], T[7], T[8]
        side = []
        self.dma_src128(DS, "v230", 896)
        if l == 0:
            self.tr_addr128(vTa, vTb, "v230", True, sQ0)
            a("s_mul_i32 %s, %s, %d" % (T[9], sW, 224 * 896)); a("s_lshl_b32 %s, %s, 7" % (T[0], sC)); a("s_add_u32 %s, %s, %s" % (T[9], T[9], T[0]))
            def w4dma(ch): return self.dma_atoms(sW4, DS, 896, (T[9], ((ch >> 1) * 896 + (ch & 1) * 112) * 896), (sQ1 if ch & 1 else sQ0, 0), sD, "w4_%d" % ch)
            def pull(ch):
                at = [((lambda ch=ch: a.wait_tag("w4_%d" % ch)), None)]
                if ch & 1: at += [("v_add_u32 v230, %d, %s" % (R1, vTa), None), ("v_add_u32 v231, %d, %s" % (R1, vTb), None)]
                for i in range(7):
                    for f in range(2):
                        ad = ("v230", "v231")[f] if ch & 1 else (vTa, vTb)[f]
                        d = ((7 * ch + i) * 2 + f) * 4
                        at.append(("ds_read_b64_tr_b16 %s, %s offset:%d" % (A(d, 2), ad, 2048 * i), None))
                        at.append(("ds_read_b64_tr_b16 %s, %s offset:%d" % (A(d + 2, 2), ad, 2048 * i + 1024), None))
                at.append(((lambda: a.wait_lds()), None))
                return at
            side += w4dma(0) + w4dma(1) + pull(0) + w4dma(2) + pull(1) + w4dma(3) + pull(2)
            side += self.dma_atoms(sWO, DS, 896, (sWROW, 0), (sQ0, 0), sD, "wo") + pull(3)
            side += self.dma_atoms(sW1, DS, 896, (sWROW, 0), (sQ1, 0), sD, "w1")
            a("v_and_b32 v232, 31, %s" % vLANE); a("v_mul_u32_u24 v232, 896, v232")
            a("v_lshrrev_b32 v233, 5, %s" % vLANE); a("v_lshl_add_u32 v232, v233, 4, v232")
            a("s_lshl_b32 %s, %s, 1" % (T[0], sR)); a("s_add_u32 %s, %s, %s" % (T[0], T[0], sU)); a("s_mul_i32 %s, %s, %d" % (T[0], T[0], 64 * 896))
            a("s_lshl_b32 %s, %s, 7" % (T[1], sC)); a("s_add_u32 %s, %s, %s" % (T[0], T[0], T[1]))
            a("s_lshl_b32 %s, %s, 5" % (T[1], sW)); a("s_add_u32 %s, %s, %s" % (T[13], T[0], T[1]))
            a("s_add_u32 %s, %s, %d" % (T[14], T[13], 32 * 896))
            side = [("buffer_load_dwordx4 %s, v232, %s, %s offen" % (V(RES + 4, 4), sX, T[13]), None),
                    ("buffer_load_dwordx4 %s, v232, %s, %s offen" % (V(RES + 12, 4), sX, T[14]), None)] + side
        else:
            side += self.dma_atoms(sWO, DS, 896, (sWROW, 0), (sQ0, 0), sD, "wo") + self.dma_atoms(sW1, DS, 896, (sWROW, 0), (sQ1, 0), sD, "w1")
        for q in range(3):
            a("s_xor_b32 %s, %s, %d" % (T[0], sW, q + 1)); a("s_mul_i32 %s, %s, 12288" % (T[0], T[0])); a("s_add_u32 %s, %s, %d" % (T[0], T[0], R2 + q * 4096))
            a("v_add_u32 %s, %s, %s" % (V(234 + q), T[0], vL16))
        a("v_min_u32 v237, 15, %s" % vLANE); a("v_lshlrev_b32 v237, 7, v237")
        if l: a("s_add_u32 %s, %s, %d" % (sK, sKV, 256 * KB))
        else: a("s_mov_b32 %s, %s" % (sK, sKV))
        def kv_off(kt):
            if kt == 1: return ["s_xor_b32 %s, %s, 1" % (sKn, sR), "s_lshl_b32 %s, %s, 14" % (sKn, sKn), "s_add_u32 %s, %s, %s" % (sKn, sKn, sK)]
            return ["s_add_u32 %s, %s, %d" % (sKn, T[15], kt << 14), "s_and_b32 %s, %s, %d" % (sKn, sKn, 15 << 14), "s_add_u32 %s, %s, %s" % (sKn, sKn, sK)]
        a("s_and_b32 %s, %s, 14" % (T[15], sR)); a("s_lshl_b32 %s, %s, 14" % (T[15], T[15]))
        def kv_load(kt, f): return "buffer_load_dwordx4 %s, %s, %s, %s offen offset:%d sc1" % (V(KB_[kt % NB] + 4 * f, 4), vL16, sWS, sKn, 1024 * f)
        def qk(n, half):
            kt, q = divmod(n, 4)
            self.mfma(SS + 16 * (n & 1), V(KB_[kt % NB] + 4 * half, 4), V(Q + 8 * q + 4 * half, 4), half == 1)
        def pv(n, half):
            kt, q = divmod(n, 4)
            self.mfma(O + 16 * q, V(KB_[kt % NB] + 8 + 4 * half, 4), V(P + 8 * (n & 1) + 4 * half, 4), not (kt == 0 and half == 0))
        def ex(n, i0):
            s = SS + 16 * (n & 1)
            for i in range(i0, i0 + 4): a("v_exp_f32 %s, %s" % (V(s + i), V(s + i)))
        def cv(n, i0):
            s = SS + 16 * (n & 1)
            for i in range(i0, i0 + 2): a("v_cvt_pk_bf16_f32 %s, %s, %s" % (V(P + 8 * (n & 1) + i), V(s + 2 * i), V(s + 2 * i + 1)))
        def owr(q):
            return [("ds_write_b128 %s, %s offset:%d" % (V(234 + q), V(O + 16 * q + 4 * g, 4), 1024 * g), None) for g in range(4)]
        nslots = 64
        first_side, last_side = 4, 58
        per = len(side) / float(4 * (last_side - first_side)); done = [0]
        def feed(n, k):
            if n < first_side: return
            want = min(len(side), int(math.ceil(per * (4 * (n - first_side) + k + 1))))
            self.put(side[done[0]:want]); done[0] = max(done[0], want)
        qk(0, 0); qk(0, 1)
        for n in range(nslots):
            kt, q = divmod(n, 4)
            free = [[], [], [], []]
            if n == 3:
                if l == 0: self.handshake_check(230)
                self.poll("v237", T[5], "v230")
                self.stamp("h1_%d" % l)
                for k2 in (1, 2, 3):
                    for t in kv_off(k2): a(t)
                    for f in range(4): a(kv_load(k2, f))
                a.barrier()
            if q == 2 and kt + NB < 16:
                o = kv_off(kt + NB); free[1].append(o[0]); free[2].append(o[1]); free[3].append(o[2])
            if n == 3 and kt + NB < 16:
                for t in kv_off(NB): a(t)
            if q == 3 and kt + NB < 16: free[0].append(kv_load(kt + NB, 0)); free[2].append(kv_load(kt + NB, 1))
            if q == 1 and kt >= 1 and kt - 1 + NB < 16: free[0].append(kv_load(kt - 1 + NB, 2)); free[2].append(kv_load(kt - 1 + NB, 3))
            if n == 2: free = [[], [], [], []]
            def fr(k):
                for t in free[k]: a(t)
                feed(n, k)
                if k == 3 and q == 2 and kt < 15 and n != 2: a.wait_regs(V(KB_[(kt + 1) % NB], 8))
                if k == 1 and q == 1 and kt >= 1: a.wait_regs(V(KB_[kt % NB] + 8, 8))
                if n >= 62 and k >= 2: self.put(owr(n - 62)[2 * (k - 2):2 * (k - 2) + 2])
            if n + 1 < nslots: qk(n + 1, 0)
            fr(0); ex(n, 0)
            if n + 1 < nslots: qk(n + 1, 1)
            fr(1); cv(n, 0); ex(n, 4)
            if n: pv(n - 1, 0)
            fr(2); cv(n, 2); ex(n, 8)
            if n: pv(n - 1, 1)
            fr(3); cv(n, 4); ex(n, 12); cv(n, 6)
        assert done[0] == len(side)
        pv(63, 0); pv(63, 1)
        self.put(owr(2))
        a("s_mul_i32 %s, %s, 12288" % (T[0], sW)); a("s_add_u32 %s, %s, %d" % (T[0], T[0], R2)); a("v_add_u32 v230, %s, %s" % (T[0], vL16))
        a.barrier()
        self.stamp("att%d" % l)
        for g in range(12): a("ds_read_b128 %s, v230 offset:%d" % (V(SS + 4 * g, 4), 1024 * g))
        OW = O + 48
        for q in range(3):
            for k in range(8): a("v_pk_add_f32 %s, %s, %s" % (V(OW + 2 * k, 2), V(OW + 2 * k, 2), V(SS + 16 * q + 2 * k, 2)))
        Lok = a.label()
        a("v_mov_b32 v230, %s" % V(OW + 12)); a("v_mov_b32 v232, %s" % V(OW + 12))
        a("v_permlane32_swap_b32 v230, v232")
        a("v_subrev_u32 v230, %s, v232" % hx(f2u(2.0 ** -60)))
        a("v_cmp_lt_u32 vcc, %s, v230" % hx(f2u(2.0 ** 60) - f2u(2.0 ** -60)))
        a("s_cbranch_vccz %s" % Lok)
        self.attention_exact(l, sK)
        a.place(Lok)
        a("v_rcp_f32 v232, v232"); a("v_mov_b32 v230, 0")
        a("s_lshl_b32 %s, %s, 15" % (T[0], sW)); a("s_lshl_b32 %s, %s, 11" % (T[1], sJ)); a("s_add_u32 %s, %s, %s" % (T[0], T[0], T[1]))
        a("s_add_u32 %s, %s, %s" % (T[0], T[0], sSG))
        if O_OFF[l]: a("s_add_u32 %s, %s, %d" % (T[0], T[0], O_OFF[l]))
        for k in range(8): a("v_pk_mul_f32 %s, %s, v[232:233] op_sel_hi:[1,0]" % (V(OW + 2 * k, 2), V(OW + 2 * k, 2)))
        for k in range(8): a("v_cvt_pk_bf16_f32 %s, %s, %s" % (V(SS + k), V(OW + 2 * k), V(OW + 2 * k + 1)))
        for k in (6, 7): a("v_cndmask_b32 %s, %s, v230, %s" % (V(SS + k), V(SS + k), sHI))
        self.mstore(["buffer_store_dwordx4 %s, %s, %s, %s offen offset:%d" % (V(SS + 4 * f, 4), vL16, sWS, T[0], 1024 * f) for f in range(2)], tag="out")
        if l == 0:
            for t in range(2):
                b = RES + 8 * t
                a("v_permlane32_swap_b32 %s, %s" % (V(b + 4), V(b + 6))); a("v_permlane32_swap_b32 %s, %s" % (V(b + 5), V(b + 7)))
                for k in range(4):
                    a("v_lshlrev_b32 %s, 16, %s" % (V(b + 2 * k) if k < 3 else "v230", V(b + 4 + k)))
                    a("v_and_b32 %s, 0xffff0000, %s" % (V(b + 2 * k + 1), V(b + 4 + k)))
                a("v_mov_b32 %s, v230" % V(b + 6))

    def attention_exact(self, l, sK):
        a = self.a
        Q, OW, SS, P, KV = 40, 96, 112, 144, 176
        vm, vmn, vt = "v230", "v231", "v233"
        L = a.label()
        a.ins.append(Ins("s_waitcnt vmcnt(0) lgkmcnt(0)"))
        save = (list(a.vm), list(a.lg)); a.vm = []; a.lg = []
        a("s_and_b32 %s, %s, %s" % (T[0], sK, hx(~0x3fff)))
        a("s_add_u32 %s, %s, %d" % (T[1], T[0], 256 * KB))
        a("v_mov_b32 %s, 0xff7fffff" % vm)
        for k in range(16): a("v_mov_b32 %s, 0" % V(OW + k))
        a.place(L)
        for f in range(4): a("buffer_load_dwordx4 %s, %s, %s, %s offen offset:%d sc1" % (V(KV + 4 * f, 4), vL16, sWS, T[0], 1024 * f))
        self.mfma(SS, V(KV, 4), V(Q, 4), False); self.mfma(SS, V(KV + 4, 4), V(Q + 4, 4), True)
        a("v_max3_f32 %s, %s, %s, %s" % (vmn, vm, V(SS), V(SS + 1)))
        for k in range(2, 16, 2): a("v_max3_f32 %s, %s, %s, %s" % (vmn, vmn, V(SS + k), V(SS + k + 1)))
        a("v_mov_b32 %s, %s" % (vt, vmn)); a("v_permlane32_swap_b32 %s, %s" % (vt, vmn)); a("v_max_f32 %s, %s, %s" % (vmn, vmn, vt))
        a("v_sub_f32 %s, %s, %s" % (vt, vm, vmn)); a("v_exp_f32 %s, %s" % (vt, vt)); a("v_mov_b32 %s, %s" % (vm, vmn))
        for k in range(16): a("v_sub_f32 %s, %s, %s" % (V(SS + k), V(SS + k), vmn))
        for k in range(16): a("v_exp_f32 %s, %s" % (V(SS + k), V(SS + k)))
        for k in range(16): a("v_mul_f32 %s, %s, %s" % (V(OW + k), V(OW + k), vt))
        for k in range(8): a("v_cvt_pk_bf16_f32 %s, %s, %s" % (V(P + k), V(SS + 2 * k), V(SS + 2 * k + 1)))
        self.mfma(OW, V(KV + 8, 4), V(P, 4), True); self.mfma(OW, V(KV + 12, 4), V(P + 4, 4), True)
        a("s_add_u32 %s, %s, 4096" % (T[0], T[0])); a("s_cmp_lt_u32 %s, %s" % (T[0], T[1]))
        a("s_nop 15")
        a("s_cbranch_scc1 %s" % L)
        a("v_mov_b32 v230, %s" % V(OW + 12)); a("v_mov_b32 v232, %s" % V(OW + 12))
        a("v_permlane32_swap_b32 v230, v232")
        a.vm, a.lg = save

    def build(self):
        a = self.a
        self.prologue()
        self.s1_first()
        for l in range(2):
            if l: self.s1_second()
            self.attention(l)
            self.after_attention(l)
        a.place("L_end")
        if self.stamps:
            a("s_lshl_b32 %s, s2, 2" % T[0]); a("s_add_u32 %s, %s, %s" % (T[0], T[0], sW)); a("s_lshl_b32 %s, %s, 8" % (T[0], T[0])); a("s_add_u32 %s, %s, %d" % (T[0], T[0], STAMP_OFF))
            a("buffer_store_dword v3, %s, %s, %s offen" % (vL4, sWS, T[0]))
        a.place("L_abort")
        a.place("L_exit")
        a("s_endpgm")
        head = open("cdna_kernels/%s.s.ref" % NAME).read().split("; Override launch")[0]
        head += "; @launch grid=(256,1,1) block=(256,1,1) lds=%d\n" % LDS_BYTES
        head += '.amdgcn_target "amdgcn-amd-amdhsa--gfx950"\n.text\n.globl %s_kernel\n.p2align 8\n.type %s_kernel,@function\n%s_kernel:\n' % (NAME, NAME, NAME)
        tail = '.section .rodata,"a"\n.p2align 6\n.amdhsa_kernel %s_kernel\n' % NAME
        tail += "  .amdhsa_next_free_vgpr 512\n  .amdhsa_next_free_sgpr 102\n  .amdhsa_accum_offset 256\n  .amdhsa_group_segment_fixed_size 0\n  .amdhsa_kernarg_size 88\n"
        tail += "  .amdhsa_user_sgpr_count 2\n  .amdhsa_user_sgpr_kernarg_segment_ptr 1\n  .amdhsa_system_sgpr_workgroup_id_x 1\n.end_amdhsa_kernel\n"
        return head + a.text() + tail

from stages import install
install(Gen)

if __name__ == "__main__":
    import argparse
    ap = argparse.ArgumentParser()
    ap.add_argument("-o", default="cdna_kernels/%s.s" % NAME)
    ap.add_argument("--stop"); ap.add_argument("--stamps", action="store_true"); ap.add_argument("--nofast", action="store_true"); ap.add_argument("--detail", default=""); ap.add_argument("--opt", default="")
    x = ap.parse_args()
    g = Gen(stop=x.stop, stamps=x.stamps, fast=not x.nofast, detail=x.detail.split(','), opt=dict(kv.split('=') for kv in x.opt.split(',') if kv))
    s = g.build()
    open(x.o, "w").write(s)
    if x.stamps: open(x.o + ".stamps", "w").write("\n".join(g.stamp_names))
    print("wrote", x.o, len(s), "bytes", len(g.a.ins), "lines")
```
